```python
import torch

def _softmax(x, axis=-1):
    return torch.softmax(x, dim=axis)
def _gelu(x):
    return torch.nn.functional.gelu(x, approximate="tanh")
def _silu(x):
    return torch.nn.functional.silu(x)
def _sigmoid(x):
    return torch.sigmoid(x)
def _layernorm(x, axis=-1, eps=1e-5):
    m = x.mean(dim=axis, keepdim=True)
    v = x.var(dim=axis, keepdim=True, unbiased=False)
    return (x - m) / torch.sqrt(v + eps)
def _scatter_add(tgt, idx, src, axis=0):
    return tgt.clone().index_add_(axis, idx, src)
def _segment_sum(src, seg, n):
    out = torch.zeros((n,) + src.shape[1:], dtype=src.dtype)
    return out.index_add_(0, seg, src)
def _pad(x, pw):
    flat = tuple(v for pair in reversed(pw) for v in pair)
    return torch.nn.functional.pad(x, flat)

kernel_name = 'sequential_preLN__spectral_gfnet__dense_activation_mish__prompt'

def setup_inputs():

    _w = (lambda a: (lambda t: t.to(torch.bfloat16) if t.is_floating_point() else t)(torch.as_tensor(a)))
    def _A_setup():
        B, S, D = 1, 2048, 1024
        Df = D // 2 + 1
        return {
            "x": _w((lambda *s: torch.randn(*s, dtype=torch.bfloat16) * 0.05)(B, S, D)),
            "w_r": _w((lambda *s: torch.randn(*s, dtype=torch.bfloat16) * 0.4)(S, Df) * 0.02),
            "w_i": _w((lambda *s: torch.randn(*s, dtype=torch.bfloat16) * 0.4)(S, Df) * 0.02),
        }
    _A_in = _A_setup()

    def _B_setup():
        B, S, D, F = 1, 2048, 1024, 3584
        return {
            "x": _w((lambda *s: torch.randn(*s, dtype=torch.bfloat16) * 0.05)(B, S, D)),
            "w1": _w((lambda *s: torch.randn(*s, dtype=torch.bfloat16) * 0.8)(D, F) * (D ** -0.5)),
            "b1": _w((lambda *s: torch.randn(*s, dtype=torch.bfloat16) * 0.2)(F)),
            "w2": _w((lambda *s: torch.randn(*s, dtype=torch.bfloat16) * 0.1)(F, D) * (F ** -0.5)),
        }
    _B_in = _B_setup()

    return {
        "A_x": _A_in["x"],
        "A_w_r": _A_in["w_r"],
        "A_w_i": _A_in["w_i"],
        "B_x": _B_in["x"],
        "B_w1": _B_in["w1"],
        "B_b1": _B_in["b1"],
        "B_w2": _B_in["w2"],
    }

def reference(A_x, A_w_r, A_w_i, B_x, B_w1, B_b1, B_w2):
    def _A_ref(x, w_r, w_i):
        B, S, D = x.shape
        X = (lambda x, axes=(-2,-1): torch.fft.rfft2(x.float(), dim=axes))(x, axes=(-2, -1))
        W = w_r + 1j * w_i
        X = X * W
        y = (lambda x, s, axes=(-2,-1): torch.fft.irfft2(x, s=s, dim=axes).to(torch.bfloat16))(X, (S, D), axes=(-2, -1))
        return y

    def _B_ref(x, w1, b1, w2):
        h = torch.einsum("bsd,df->bsf", x, w1) + b1
        sp = torch.log1p(torch.exp(-torch.abs(h))) + torch.where(h > 0, h, torch.zeros_like(h))
        act = h * torch.tanh(sp)
        return torch.einsum("bsf,fd->bsd", act, w2)

    x = A_x
    h = x + _A_ref(_layernorm(x, axis=-1), A_w_r, A_w_i)
    h2 = h + _B_ref(_layernorm(h, axis=-1), B_w1, B_b1, B_w2)
    return h2
```

```python
import re

TRANS = ("v_exp_f32", "v_log_f32", "v_rcp_f32", "v_rsq_f32", "v_sqrt_f32", "v_sin_f32", "v_cos_f32",
         "v_rcp_iflag_f32")

def parse_regs(tok):
    tok = tok.strip()
    out = set()
    t = tok.lstrip("-")
    m = re.match(r"^abs\((.*)\)$", t)
    if m: t = m.group(1)
    t = t.strip("|")
    m = re.match(r"^([vsa])(\d+)$", t)
    if m:
        out.add((m.group(1), int(m.group(2)))); return out
    m = re.match(r"^([vsa])\[(\d+):(\d+)\]$", t)
    if m:
        for i in range(int(m.group(2)), int(m.group(3)) + 1):
            out.add((m.group(1), i))
        return out
    if t in ("vcc", "vcc_lo", "vcc_hi"): out.add(("vcc",))
    elif t in ("exec", "exec_lo", "exec_hi"): out.add(("exec",))
    elif t == "m0": out.add(("m0",))
    return out

class Ins:
    def __init__(self, text):
        self.text = text
        self.label = None
        self.op = None
        self.rd = set(); self.wr = set()
        self.kind = "other"
        self.branch = None
        self.passes = 0
        self.srcC = set(); self.srcAB = set()
        self.dpp = False
        self.states = 1
        s = text.split(";")[0].strip()
        if not s:
            self.kind = "empty"; self.states = 0; return
        if s.endswith(":"):
            self.kind = "label"; self.label = s[:-1]; self.states = 0; return
        if s.startswith("."):
            self.kind = "empty"; self.states = 0; return
        parts = s.split(None, 1)
        op = parts[0]; self.op = op
        rest = parts[1] if len(parts) > 1 else ""
        ops = []; depth = 0; cur = ""
        for ch in rest:
            if ch in "[(": depth += 1
            if ch in "])": depth -= 1
            if ch == "," and depth == 0:
                ops.append(cur.strip()); cur = ""
            else:
                cur += ch
        if cur.strip(): ops.append(cur.strip())
        mods = ""
        if ops:
            last = ops[-1]; depth = 0; cut = None
            for i, ch in enumerate(last):
                if ch in "[(": depth += 1
                if ch in "])": depth -= 1
                if ch == " " and depth == 0:
                    cut = i; break
            if cut is not None:
                mods = last[cut:]; ops[-1] = last[:cut]
        self.mods = mods
        self.ops = ops
        R = [parse_regs(o) for o in ops]
        base = re.sub(r"_e(32|64)$", "", op); base = re.sub(r"_dpp$", "", base); base = re.sub(r"_sdwa$", "", base)
        self.base = base
        if op == "s_nop":
            self.kind = "nop"; self.states = int(ops[0], 0) + 1; return
        if op.startswith("s_cbranch") or op == "s_branch":
            self.kind = "branch"; self.branch = ops[0]
            if "vcc" in op: self.rd.add(("vcc",))
            if "exec" in op: self.rd.add(("exec",))
            return
        if op in ("s_waitcnt", "s_barrier", "s_endpgm", "s_setprio", "s_sleep"):
            self.kind = "sync" if op != "s_endpgm" else "end"; return
        if op.startswith("v_mfma"):
            self.kind = "mfma"
            self.wr |= R[0]; self.srcAB = R[1] | R[2]; self.srcC = R[3]
            self.rd |= R[1] | R[2] | R[3]
            if "32x32x16" in op or "32x32x8" in op: self.passes = 8
            elif "16x16x32" in op or "16x16x16" in op: self.passes = 4
            elif "32x32x2_f32" in op: self.passes = 16
            elif "16x16x4_f32" in op: self.passes = 8
            else: raise Exception("unknown mfma " + op)
            return
        if op.startswith("v_"):
            self.kind = "valu"
            self.trans = base in TRANS
            self.dpp = ("quad_perm" in mods or "row_" in mods or "wave_" in mods)
            if base.startswith("v_cmp"):
                self.wr |= R[0]
                for r in R[1:]: self.rd |= r
                if base.startswith("v_cmpx"): self.wr.add(("exec",))
            elif base in ("v_readlane_b32", "v_readfirstlane_b32"):
                self.wr |= R[0]
                for r in R[1:]: self.rd |= r
                self.kind = "readlane"
            elif base in ("v_add_co_u32", "v_sub_co_u32", "v_subrev_co_u32"):
                self.wr |= R[0] | R[1]
                for r in R[2:]: self.rd |= r
            elif base in ("v_addc_co_u32", "v_subb_co_u32"):
                self.wr |= R[0] | R[1]
                for r in R[2:]: self.rd |= r
            elif base in ("v_swap_b32", "v_permlane32_swap_b32", "v_permlane16_swap_b32"):
                self.wr |= R[0] | R[1]; self.rd |= R[0] | R[1]
            else:
                self.wr |= R[0]
                for r in R[1:]: self.rd |= r
                if base in ("v_fmac_f32", "v_pk_fmac_f16", "v_fmaak_f32_x", "v_writelane_b32") or self.dpp:
                    self.rd |= R[0]
                if base in ("v_cndmask_b32",) and len(ops) == 3:
                    self.rd.add(("vcc",))
            self.rd.add(("exec",))
            return
        if op.startswith("s_load") or op.startswith("s_buffer_load"):
            self.kind = "smem"; self.wr |= R[0]
            for r in R[1:]: self.rd |= r
            return
        if op.startswith("s_"):
            self.kind = "salu"
            if op.startswith("s_cmp") or op.startswith("s_bitcmp"):
                for r in R: self.rd |= r
            else:
                self.wr |= R[0]
                for r in R[1:]: self.rd |= r
                if "saveexec" in op:
                    self.wr.add(("exec",)); self.rd.add(("exec",))
            return
        if op.startswith("buffer_") or op.startswith("global_") or op.startswith("flat_"):
            self.kind = "vmem"
            is_store = "store" in op or ("atomic" in op)
            self.wide_store = is_store and ("x3" in op or "x4" in op)
            lds = re.search(r"\blds\b", mods) is not None or "_lds_" in op
            if lds:
                for r in R: self.rd |= r
                self.rd.add(("m0",)); self.ldsdma = True
            elif is_store:
                for r in R: self.rd |= r
                if op.startswith("buffer_"): self.store_data = R[0]
                else: self.store_data = R[1]
            else:
                self.wr |= R[0]
                for r in R[1:]: self.rd |= r
            return
        if op.startswith("ds_"):
            self.kind = "ds"
            if op.startswith("ds_write") or op.startswith("ds_store"):
                for r in R: self.rd |= r
            else:
                self.wr |= R[0]
                for r in R[1:]: self.rd |= r
            return
        raise Exception("cannot classify: " + text)

def isv(x): return x[0] in ("v", "a")
def iss(x): return x[0] == "s" or x[0] == "vcc"

def need(prod, cons):
    n = 0
    pk, ck = prod.kind, cons.kind
    pv = {r for r in prod.wr if isv(r)}
    ps = {r for r in prod.wr if iss(r)}
    if pk in ("valu", "readlane"):
        if pv:
            if ck == "mfma" and pv & cons.rd: n = max(n, 2)
            if ck == "readlane" and pv & cons.rd: n = max(n, 1)
            if ck == "valu" and cons.dpp and pv & cons.rd: n = max(n, 2)
            if ck == "valu" and cons.base.startswith("v_permlane") and pv & cons.rd: n = max(n, 2)
            if pk == "valu" and prod.trans and ck in ("valu", "readlane", "mfma") and not getattr(cons, "trans", False) and pv & cons.rd: n = max(n, 1)
            if pk == "valu" and prod.trans and ck in ("vmem", "ds") and pv & cons.rd: n = max(n, 1)
        if ps:
            if ck in ("valu",) and ps & cons.rd: n = max(n, 2)
            if ck == "readlane" and ps & cons.rd: n = max(n, 4)
            if ck == "vmem" and ps & cons.rd: n = max(n, 5)
            if ck in ("salu", "smem", "branch") and ps & cons.rd: n = max(n, 4)
        if ("exec",) in prod.wr:
            if ck in ("valu", "readlane", "mfma"): n = max(n, 5)
    if pk == "mfma":
        P = prod.passes
        if ck == "mfma":
            if prod.wr & cons.srcC:
                if prod.wr == cons.srcC and P == cons.passes: n = max(n, 0 if P >= 4 else 2)
                else: n = max(n, {2: 4, 4: 6, 8: 10, 16: 18}[P])
            if prod.wr & cons.srcAB: n = max(n, {2: 5, 4: 8, 8: 12, 16: 20}[P])
            if prod.wr & cons.wr and not (prod.wr & cons.srcC): n = max(n, {2: 5, 4: 8, 8: 12, 16: 20}[P])
        elif ck in ("valu", "readlane", "vmem", "ds"):
            if prod.wr & (cons.rd | cons.wr): n = max(n, {2: 5, 4: 8, 8: 12, 16: 20}[P])
            if ck in ("valu", "readlane") and prod.srcC & cons.wr: n = max(n, {2: 1, 4: 3, 8: 7, 16: 15}[P])
    if pk == "salu" and ("m0",) in prod.wr and getattr(cons, "ldsdma", False): n = max(n, 1)
    if pk == "vmem" and getattr(prod, "wide_store", False):
        if cons.wr & prod.store_data: n = max(n, 2)
    return n

MAXLOOK = 22

def hazard_pass(lines):
    ins = [Ins(l) for l in lines]
    labels = {i.label: k for k, i in enumerate(ins) if i.kind == "label"}
    jump_src = {}
    for k, i in enumerate(ins):
        if i.kind == "branch":
            jump_src.setdefault(labels[i.branch], []).append(k)
    out = []
    pad_before = [0] * len(ins)
    def required(k):
        cons = ins[k]
        best = 0
        stack = [(k - 1, pad_before[k], False)]
        seen = {}
        while stack:
            j, dist, viajump = stack.pop()
            first = True
            while j >= 0 and dist < MAXLOOK:
                p = ins[j]
                if not (first and viajump):
                    if p.kind == "end" or (p.kind == "branch" and p.op == "s_branch"):
                        break
                first = False
                if seen.get(j, 99) <= dist: break
                seen[j] = dist
                if p.kind == "label":
                    for src in jump_src.get(j, []):
                        stack.append((src, dist + pad_before[j], True))
                if p.kind not in ("label", "empty", "nop", "sync", "branch", "end"):
                    nd = need(p, cons)
                    if nd > dist: best = max(best, nd - dist)
                dist += p.states + pad_before[j]
                j -= 1
        return best
    changed = True
    while changed:
        changed = False
        for k, i in enumerate(ins):
            if i.kind in ("label", "empty", "nop", "sync", "end"): continue
            r = required(k)
            if r > 0:
                pad_before[k] += r; changed = True
    for k, i in enumerate(ins):
        p = pad_before[k]
        while p > 0:
            q = min(p, 16); out.append("    s_nop %d" % (q - 1)); p -= q
        out.append(i.text)
    return out

class Kern:
    def __init__(self, name):
        self.name = name; self.L = []; self.nlab = 0
        self.vmax = 0; self.smax = 0
    def __call__(self, s):
        for l in s.strip("\n").split("\n"):
            l = l.strip()
            if not l: continue
            self.L.append(("" if l.endswith(":") else "    ") + l)
    def label(self, p="L"):
        self.nlab += 1
        return "%s_%s_%d" % (p, self.name, self.nlab)
    def finish(self, lds=0):
        lines = hazard_pass(self.L)
        vmax = smax = 0
        for l in lines:
            i = Ins(l)
            for r in (i.rd | i.wr):
                if r[0] == "v": vmax = max(vmax, r[1] + 1)
                if r[0] == "s": smax = max(smax, r[1] + 1)
        self.vgprs = max(vmax, 8); self.sgprs = max(smax, 16)
        txt = ".globl %s\n.p2align 8\n.type %s,@function\n%s:\n" % (self.name, self.name, self.name)
        txt += "\n".join(lines) + "\n"
        return txt
    def descriptor(self):
        acc = (self.vgprs + 3) // 4 * 4
        return (".amdhsa_kernel %s\n  .amdhsa_next_free_vgpr %d\n  .amdhsa_next_free_sgpr %d\n"
                "  .amdhsa_accum_offset %d\n  .amdhsa_group_segment_fixed_size 0\n  .amdhsa_kernarg_size 80\n"
                "  .amdhsa_user_sgpr_count 2\n  .amdhsa_user_sgpr_kernarg_segment_ptr 1\n"
                "  .amdhsa_system_sgpr_workgroup_id_x 1\n  .amdhsa_float_denorm_mode_32 3\n.end_amdhsa_kernel\n") % (
                    self.name, self.vgprs, self.sgprs, acc)

HEADER = open("sequential_preLN__spectral_gfnet__dense_activation_mish__prompt.s.ref").read().split("; Override launch")[0]

def make_file(kernels, path):
    txt = HEADER
    bodies = []; seen = {}
    for k, g, b, lds in kernels:
        txt += "; @launch kernel=%s grid=(%d,1,1) block=(%d,1,1) lds=%d\n" % (k.name, g, b, lds)
    txt += '.amdgcn_target "amdgcn-amd-amdhsa--gfx950"\n.text\n'
    for k, g, b, lds in kernels:
        if k.name in seen: continue
        seen[k.name] = k
        txt += k.finish()
    txt += '.section .rodata,"a"\n'
    for k in seen.values():
        txt += ".p2align 6\n" + k.descriptor()
    open(path, "w").write(txt)
```

```python
import math, struct
from asmgen import *

def f2h(x):
    return "0x%08x" % struct.unpack("<I", struct.pack("<f", x))[0]

class Pool:
    def __init__(self, lo, hi):
        self.free = list(range(lo, hi, 2))
        self.hi = lo
    def get(self):
        r = self.free.pop(0); return r
    def put(self, r):
        assert r not in self.free
        self.free.append(r); self.free.sort()

def P(r): return "v[%d:%d]" % (r, r + 1)

class CG:
    def __init__(self, k, pool, sconst_base):
        self.k = k; self.pool = pool
        self.sbase = sconst_base; self.consts = {}
    def sconst(self, re, im):
        key = (f2h(re), f2h(im))
        if key not in self.consts:
            s = self.sbase + 2 * len(self.consts)
            self.consts[key] = s
        return self.consts[key]
    def const_init(self):
        out = []
        for (re, im), s in self.consts.items():
            out.append("s_mov_b32 s%d, %s" % (s, re)); out.append("s_mov_b32 s%d, %s" % (s + 1, im))
        return out
    def add(self, a, b, free=True):
        d = self.pool.get()
        self.k("v_pk_add_f32 %s, %s, %s" % (P(d), P(a), P(b)))
        return d
    def sub(self, a, b):
        d = self.pool.get()
        self.k("v_pk_add_f32 %s, %s, %s neg_lo:[0,1] neg_hi:[0,1]" % (P(d), P(a), P(b)))
        return d
    def add_mi(self, a, b):
        d = self.pool.get()
        self.k("v_pk_add_f32 %s, %s, %s op_sel:[0,1] op_sel_hi:[1,0] neg_hi:[0,1]" % (P(d), P(a), P(b)))
        return d
    def add_pi(self, a, b):
        d = self.pool.get()
        self.k("v_pk_add_f32 %s, %s, %s op_sel:[0,1] op_sel_hi:[1,0] neg_lo:[0,1]" % (P(d), P(a), P(b)))
        return d
    def mulc(self, a, re, im):
        if abs(re - 1) < 1e-12 and abs(im) < 1e-12: return a
        s = self.sconst(re, im); S = "s[%d:%d]" % (s, s + 1)
        t = self.pool.get(); d = self.pool.get()
        self.k("v_pk_mul_f32 %s, %s, %s op_sel:[0,0] op_sel_hi:[1,0]" % (P(t), P(a), S))
        self.k("v_pk_fma_f32 %s, %s, %s, %s op_sel:[1,1,0] op_sel_hi:[0,1,1] neg_lo:[1,0,0]" % (P(d), P(a), S, P(t)))
        self.pool.put(t); self.pool.put(a)
        return d
    def mulv(self, a, w):
        t = self.pool.get(); d = self.pool.get()
        self.k("v_pk_mul_f32 %s, %s, %s op_sel:[0,0] op_sel_hi:[1,0]" % (P(t), P(a), P(w)))
        self.k("v_pk_fma_f32 %s, %s, %s, %s op_sel:[1,1,0] op_sel_hi:[0,1,1] neg_lo:[1,0,0]" % (P(d), P(a), P(w), P(t)))
        self.pool.put(t); self.pool.put(a)
        return d
    def r2(self, x):
        a, b = x
        s = self.add(a, b); d = self.sub(a, b)
        self.pool.put(a); self.pool.put(b)
        return [s, d]
    def r4(self, x, inv):
        a0, a1, a2, a3 = x
        t0 = self.add(a0, a2); t1 = self.sub(a0, a2); t2 = self.add(a1, a3); t3 = self.sub(a1, a3)
        for a in x: self.pool.put(a)
        X0 = self.add(t0, t2); X2 = self.sub(t0, t2)
        if not inv:
            X1 = self.add_mi(t1, t3); X3 = self.add_pi(t1, t3)
        else:
            X1 = self.add_pi(t1, t3); X3 = self.add_mi(t1, t3)
        for a in (t0, t1, t2, t3): self.pool.put(a)
        return [X0, X1, X2, X3]
    def dft(self, x, inv):
        n = len(x)
        if n == 1: return x
        if n == 2: return self.r2(x)
        if n == 4: return self.r4(x, inv)
        r = 4; m = n // r
        sg = 1.0 if inv else -1.0
        y = [[None] * m for _ in range(r)]
        for n0 in range(m):
            o = self.r4([x[m * n1 + n0] for n1 in range(r)], inv)
            for k1 in range(r):
                e = (n0 * k1) % n
                ang = sg * 2 * math.pi * e / n
                re, im = math.cos(ang), math.sin(ang)
                if abs(re) < 1e-9: re = 0.0
                if abs(im) < 1e-9: im = 0.0
                y[k1][n0] = self.mulc(o[k1], re, im)
        out = [None] * n
        for k1 in range(r):
            o = self.dft(y[k1], inv)
            for k0 in range(m): out[k1 + r * k0] = o[k0]
        return out
    def twiddle(self, x, vr_f, M, inv, tmp):
        k = self.k
        out = [x[0]]
        sg = 1.0 if inv else -1.0
        for j in range(1, len(x)):
            w = self.pool.get()
            k("v_mul_f32 v%d, %s, v%d" % (tmp, f2h(sg * j / M), vr_f))
            k("v_cos_f32 v%d, v%d" % (w, tmp))
            k("v_sin_f32 v%d, v%d" % (w + 1, tmp))
            out.append(self.mulv(x[j], w))
            self.pool.put(w)
        return out

def wave_sum(k, v):
    k("v_add_f32_dpp v%d, v%d, v%d quad_perm:[1,0,3,2] row_mask:0xf bank_mask:0xf" % (v, v, v))
    k("v_add_f32_dpp v%d, v%d, v%d quad_perm:[2,3,0,1] row_mask:0xf bank_mask:0xf" % (v, v, v))
    k("v_add_f32_dpp v%d, v%d, v%d row_half_mirror row_mask:0xf bank_mask:0xf" % (v, v, v))
    k("v_add_f32_dpp v%d, v%d, v%d row_mirror row_mask:0xf bank_mask:0xf" % (v, v, v))
    k("v_add_f32_dpp v%d, v%d, v%d row_bcast:15 row_mask:0xa bank_mask:0xf" % (v, v, v))
    k("v_add_f32_dpp v%d, v%d, v%d row_bcast:31 row_mask:0xc bank_mask:0xf" % (v, v, v))

def bf16_round(k, v, t=None):
    k("v_cvt_pk_bf16_f32 v%d, v%d, v%d" % (v, v, v))
    k("v_lshlrev_b32 v%d, 16, v%d" % (v, v))

def layernorm_regs(k, xs, t0, t1, sA, sB):
    k("v_add_f32 v%d, v%d, v%d" % (t0, xs[0], xs[1]))
    for x in xs[2:]: k("v_add_f32 v%d, v%d, v%d" % (t0, t0, x))
    wave_sum(k, t0)
    k("v_readlane_b32 s%d, v%d, 63" % (sA, t0))
    k("v_mov_b32 v%d, %s" % (t1, f2h(1.0 / 1024)))
    k("v_mul_f32 v%d, s%d, v%d" % (t1, sA, t1))
    k("v_sub_f32 v%d, v%d, v%d" % (t0, xs[0], t1))
    k("v_mul_f32 v%d, v%d, v%d" % (t0, t0, t0))
    return t1

def layernorm_finish(k, xs, t0, t1, t2, sA):
    for x in xs[1:]:
        k("v_sub_f32 v%d, v%d, v%d" % (t2, x, t1))
        k("v_fmac_f32 v%d, v%d, v%d" % (t0, t2, t2))
    wave_sum(k, t0)
    k("v_readlane_b32 s%d, v%d, 63" % (sA, t0))
    k("v_mov_b32 v%d, %s" % (t0, f2h(1.0 / 1024)))
    k("v_mul_f32 v%d, s%d, v%d" % (t0, sA, t0))
    bf16_round(k, t0)
    k("v_add_f32 v%d, %s, v%d" % (t0, f2h(1e-5), t0))
    bf16_round(k, t0)
    k("v_sqrt_f32 v%d, v%d" % (t0, t0))
    bf16_round(k, t0)
    k("v_rcp_f32 v%d, v%d" % (t0, t0))
    bf16_round(k, t1)
    for i in range(0, len(xs), 2):
        a, b = xs[i], xs[i + 1]
        k("v_sub_f32 v%d, v%d, v%d" % (a, a, t1))
        k("v_sub_f32 v%d, v%d, v%d" % (b, b, t1))
        k("v_cvt_pk_bf16_f32 v%d, v%d, v%d" % (t2, a, b))
        k("v_lshlrev_b32 v%d, 16, v%d" % (a, t2))
        k("v_and_b32 v%d, 0xffff0000, v%d" % (b, t2))
        k("v_mul_f32 v%d, v%d, v%d" % (a, a, t0))
        k("v_mul_f32 v%d, v%d, v%d" % (b, b, t0))
        k("v_cvt_pk_bf16_f32 v%d, v%d, v%d" % (t2, a, b))
        k("v_lshlrev_b32 v%d, 16, v%d" % (a, t2))
        k("v_and_b32 v%d, 0xffff0000, v%d" % (b, t2))

def srd(k, s, ptr_s, nbytes, off=0):
    if off:
        k("s_add_u32 s%d, s%d, %d" % (s, ptr_s, off))
        k("s_addc_u32 s%d, s%d, 0" % (s + 1, ptr_s + 1))
        k("s_and_b32 s%d, s%d, 0xffff" % (s + 1, s + 1))
    else:
        k("s_mov_b32 s%d, s%d" % (s, ptr_s))
        k("s_and_b32 s%d, s%d, 0xffff" % (s + 1, ptr_s + 1))
    k("s_mov_b32 s%d, %d" % (s + 2, nbytes))
    k("s_mov_b32 s%d, 0x00020000" % (s + 3))
```

```python
from fftgen import *

WS_X1T = 0
X1T_BYTES = 513 * 2048 * 8
WS_H = 16 << 20
WS_LN2 = 24 << 20
WS_ACT = 32 << 20
REG_PITCH = 8704 + 64

def padA(k, dst, idx):
    k("v_lshrrev_b32 v%d, 6, v%d" % (dst, idx))
    k("v_lshl_add_u32 v%d, v%d, 2, v%d" % (dst, dst, idx))
    k("v_lshlrev_b32 v%d, 3, v%d" % (dst, dst))

def padoffA(i): return (i + 4 * (i >> 6)) * 8

def row_fft_passes(k, cg, X, inv, vlane, vbase, vt):
    pool = cg.pool
    vf, va, tmp, vr = vt
    Y = cg.dft(X, inv)
    k("v_cvt_f32_u32 v%d, v%d" % (vf, vlane))
    Y = cg.twiddle(Y, vf, 1024, inv, tmp)
    k("v_lshl_add_u32 v%d, v%d, 3, v%d" % (va, vlane, vbase))
    for k1 in range(16):
        k("ds_write_b64 v%d, %s offset:%d" % (va, P(Y[k1]), k1 * 68 * 8))
        pool.put(Y[k1])
    k("v_lshrrev_b32 v%d, 2, v%d" % (va, vlane))
    k("v_mul_u32_u24 v%d, 68, v%d" % (va, va))
    k("v_and_b32 v%d, 3, v%d" % (vr, vlane))
    k("v_add_u32 v%d, v%d, v%d" % (va, va, vr))
    k("v_lshl_add_u32 v%d, v%d, 3, v%d" % (va, va, vbase))
    X = []
    for m in range(16):
        r = pool.get(); X.append(r)
        k("ds_read_b64 %s, v%d offset:%d" % (P(r), va, m * 32))
    k("s_waitcnt lgkmcnt(0)")
    Y = cg.dft(X, inv)
    k("v_cvt_f32_u32 v%d, v%d" % (vf, vr))
    Y = cg.twiddle(Y, vf, 64, inv, tmp)
    for j1 in range(16):
        k("ds_write_b64 v%d, %s offset:%d" % (va, P(Y[j1]), j1 * 32))
        pool.put(Y[j1])
    k("v_and_b32 v%d, 15, v%d" % (va, vlane))
    k("v_mul_u32_u24 v%d, 68, v%d" % (va, va))
    k("v_lshrrev_b32 v%d, 4, v%d" % (vr, vlane))
    k("v_lshl_add_u32 v%d, v%d, 2, v%d" % (va, vr, va))
    k("v_lshl_add_u32 v%d, v%d, 3, v%d" % (va, va, vbase))
    XX = []
    for q in range(4):
        rs = []
        for e in range(4):
            r = pool.get(); rs.append(r)
            k("ds_read_b64 %s, v%d offset:%d" % (P(r), va, q * 128 + e * 8))
        XX.append(rs)
    k("s_waitcnt lgkmcnt(0)")
    out = []
    for q in range(4):
        out.append(cg.dft(XX[q], inv))
    return out

def kernel_a():
    k = Kern("fft_a_kernel")
    pool = Pool(16, 112)
    cg = CG(k, pool, 40)
    k("""
    s_load_dwordx2 s[4:5], s[0:1], 0
    s_load_dwordx2 s[6:7], s[0:1], 72
    s_cmp_ge_u32 s2, 256
    s_cbranch_scc1 fa_end
    s_waitcnt lgkmcnt(0)
    """)
    srd(k, 8, 4, 2048 * 1024 * 2)
    srd(k, 12, 6, X1T_BYTES)
    cpos = len(k.L)
    k("""
    v_and_b32 v1, 63, v0
    v_lshrrev_b32 v2, 6, v0
    s_lshl_b32 s16, s2, 3
    v_lshl_add_u32 v3, v2, 1, s16
    v_lshlrev_b32 v3, 11, v3
    v_lshl_add_u32 v3, v1, 1, v3
    """)
    X = [pool.get() for _ in range(16)]
    for j in range(16):
        k("buffer_load_ushort v%d, v3, s[8:11], 0 offen offset:%d" % (X[j], j * 128))
        k("buffer_load_ushort v%d, v3, s[8:11], 0 offen offset:%d" % (X[j] + 1, 2048 + j * 128))
    k("v_mul_u32_u24 v4, %d, v2" % REG_PITCH)
    k("s_waitcnt vmcnt(0)")
    for j in range(16):
        k("v_lshlrev_b32 v%d, 16, v%d" % (X[j], X[j]))
        k("v_lshlrev_b32 v%d, 16, v%d" % (X[j] + 1, X[j] + 1))
    xa = [r for r in X]; xb = [r + 1 for r in X]
    layernorm_regs(k, xa, 5, 6, 20, 21)
    layernorm_regs(k, xb, 7, 8, 22, 23)
    layernorm_finish(k, xa, 5, 6, 9, 20)
    layernorm_finish(k, xb, 7, 8, 10, 22)
    out = row_fft_passes(k, cg, X, False, 1, 4, (5, 6, 7, 8))
    k("v_lshl_add_u32 v6, v1, 3, v4")
    for q in range(4):
        for j0 in range(4):
            k("ds_write_b64 v6, %s offset:%d" % (P(out[q][j0]), 68 * 8 * (q + 4 * j0)))
            pool.put(out[q][j0])
    k("s_waitcnt lgkmcnt(0)")
    k("s_barrier")
    k("""
    v_and_b32 v5, 3, v0
    v_mul_u32_u24 v6, %d, v5
    v_lshrrev_b32 v7, 2, v0
    v_lshl_add_u32 v8, v5, 1, s16
    v_lshlrev_b32 v8, 3, v8
    """ % REG_PITCH)
    regs = []
    for it in range(9):
        a = pool.get(); b = pool.get()
        regs.append((a, b))
        k("v_add_u32 v9, %d, v7" % (64 * it))
        padA(k, 10, 9)
        k("v_add_u32 v10, v10, v6")
        k("ds_read_b64 %s, v10" % P(a))
        k("v_sub_u32 v11, 1024, v9")
        k("v_and_b32 v11, 1023, v11")
        padA(k, 12, 11)
        k("v_add_u32 v12, v12, v6")
        k("ds_read_b64 %s, v12" % P(b))
    k("s_waitcnt lgkmcnt(0)")
    for it in range(9):
        a, b = regs[it]
        o = 112 + 4 * (it % 2)
        k("v_add_f32 v%d, v%d, v%d" % (o, a, b))
        k("v_sub_f32 v%d, v%d, v%d" % (o + 1, a + 1, b + 1))
        k("v_add_f32 v%d, v%d, v%d" % (o + 2, a + 1, b + 1))
        k("v_sub_f32 v%d, v%d, v%d" % (o + 3, b, a))
        k("v_add_u32 v9, %d, v7" % (64 * it))
        k("v_lshl_add_u32 v9, v9, 14, v8")
        k("buffer_store_dwordx4 v[%d:%d], v9, s[12:15], 0 offen" % (o, o + 3))
    k("fa_end:")
    k("s_endpgm")
    k.L[cpos:cpos] = ["    " + l for l in cg.const_init()]
    return k, 4 * REG_PITCH

def kernel_b():
    k = Kern("fft_b_kernel")
    pool = Pool(24, 120)
    cg = CG(k, pool, 40)
    k("""
    s_load_dwordx4 s[4:7], s[0:1], 8
    s_load_dwordx2 s[16:17], s[0:1], 72
    s_cmp_ge_u32 s2, 513
    s_cbranch_scc1 fb_end
    s_waitcnt lgkmcnt(0)
    """)
    srd(k, 8, 4, 2048 * 513 * 2)
    srd(k, 12, 6, 2048 * 513 * 2)
    srd(k, 20, 16, X1T_BYTES)
    cpos = len(k.L)
    k("s_lshl_b32 s24, s2, 14")
    k("v_lshlrev_b32 v1, 3, v0")
    X = [pool.get() for _ in range(8)]
    for j in range(8):
        k("s_add_u32 s25, s24, %d" % (j * 2048))
        k("buffer_load_dwordx2 %s, v1, s[20:23], s25 offen" % P(X[j]))
    k("""
    v_lshrrev_b32 v2, 6, v0
    v_bfe_u32 v3, v0, 3, 3
    v_lshl_add_u32 v2, v3, 3, v2
    v_and_b32 v3, 7, v0
    v_lshl_add_u32 v2, v3, 6, v2
    v_mul_u32_u24 v2, 1026, v2
    s_lshl_b32 s26, s2, 1
    v_add_u32 v2, s26, v2
    """)
    W = [[pool.get() for _ in range(4)] for _ in range(2)]
    for h in range(2):
        for k4 in range(4):
            off = (4 * h + 512 * k4) * 1026
            k("v_add_u32 v3, %d, v2" % off)
            k("buffer_load_ushort v%d, v3, s[8:11], 0 offen" % W[h][k4])
            k("buffer_load_ushort v%d, v3, s[12:15], 0 offen" % (W[h][k4] + 1))
    vf, va, tmp, vr = 4, 5, 6, 7
    def addr_pass(ps):
        if ps == 1:
            k("v_lshrrev_b32 v%d, 5, v0" % va)
            k("v_lshl_add_u32 v%d, v%d, 2, v0" % (va, va))
            k("v_lshlrev_b32 v%d, 3, v%d" % (va, va))
            k("v_cvt_f32_u32 v%d, v0" % vf)
            return [j * 288 * 8 for j in range(8)]
        if ps == 2:
            k("v_lshrrev_b32 v%d, 5, v0" % va)
            k("v_mul_u32_u24 v%d, 288, v%d" % (va, va))
            k("v_and_b32 v%d, 31, v0" % vr)
            k("v_add_u32 v%d, v%d, v%d" % (va, va, vr))
            k("v_lshlrev_b32 v%d, 3, v%d" % (va, va))
            k("v_cvt_f32_u32 v%d, v%d" % (vf, vr))
            return [j * 36 * 8 for j in range(8)]
        if ps == 3:
            k("v_lshrrev_b32 v%d, 2, v0" % va)
            k("v_mul_u32_u24 v%d, 36, v%d" % (va, va))
            k("v_and_b32 v%d, 3, v0" % vr)
            k("v_add_u32 v%d, v%d, v%d" % (va, va, vr))
            k("v_lshlrev_b32 v%d, 3, v%d" % (va, va))
            k("v_cvt_f32_u32 v%d, v%d" % (vf, vr))
            return [j * 4 * 8 for j in range(8)]
        if ps == 4:
            k("v_lshrrev_b32 v%d, 3, v0" % va)
            k("v_add_u32 v%d, v%d, v0" % (va, va))
            k("v_lshlrev_b32 v%d, 5, v%d" % (va, va))
            return [(h * 1152 + e) * 8 for h in range(2) for e in range(4)]
    def wr(Y, offs):
        for j in range(8):
            k("ds_write_b64 v%d, %s offset:%d" % (va, P(Y[j]), offs[j])); pool.put(Y[j])
        k("s_waitcnt lgkmcnt(0)")
        k("s_barrier")
    def rd(offs):
        X = []
        for j in range(8):
            r = pool.get(); X.append(r)
            k("ds_read_b64 %s, v%d offset:%d" % (P(r), va, offs[j]))
        k("s_waitcnt lgkmcnt(0)")
        return X
    offs = addr_pass(1)
    k("s_waitcnt vmcnt(16)")
    Y = cg.dft(X, False); Y = cg.twiddle(Y, vf, 2048, False, tmp); wr(Y, offs)
    for ps, M in ((2, 256), (3, 32)):
        offs = addr_pass(ps)
        X = rd(offs); Y = cg.dft(X, False); Y = cg.twiddle(Y, vf, M, False, tmp); wr(Y, offs)
    offs = addr_pass(4)
    X = rd(offs)
    k("s_waitcnt vmcnt(0)")
    Y = []
    for h in range(2):
        o = cg.dft(X[4 * h:4 * h + 4], False)
        for k4 in range(4):
            w = W[h][k4]
            k("v_lshlrev_b32 v%d, 16, v%d" % (w, w))
            k("v_lshlrev_b32 v%d, 16, v%d" % (w + 1, w + 1))
            o[k4] = cg.mulv(o[k4], w); pool.put(w)
        Y += cg.dft(o, True)
    wr(Y, offs)
    for ps, M in ((3, 32), (2, 256)):
        offs = addr_pass(ps)
        X = rd(offs); X = cg.twiddle(X, vf, M, True, tmp); Y = cg.dft(X, True); wr(Y, offs)
    offs = addr_pass(1)
    X = rd(offs); X = cg.twiddle(X, vf, 2048, True, tmp); Y = cg.dft(X, True)
    for j in range(8):
        k("s_add_u32 s25, s24, %d" % (j * 2048))
        k("buffer_store_dwordx2 %s, v1, s[20:23], s25 offen" % P(Y[j]))
    k("fb_end:")
    k("s_endpgm")
    k.L[cpos:cpos] = ["    " + l for l in cg.const_init()]
    return k, 2304 * 8

def kernel_c():
    k = Kern("fft_c_kernel")
    pool = Pool(16, 112)
    cg = CG(k, pool, 40)
    k("""
    s_load_dwordx2 s[4:5], s[0:1], 0
    s_load_dwordx2 s[6:7], s[0:1], 72
    s_cmp_ge_u32 s2, 256
    s_cbranch_scc1 fc_end
    s_waitcnt lgkmcnt(0)
    """)
    srd(k, 8, 4, 2048 * 1024 * 2)
    srd(k, 12, 6, X1T_BYTES)
    srd(k, 24, 6, 2048 * 1024 * 2, WS_H)
    srd(k, 28, 6, 2048 * 1024 * 2, WS_LN2)
    cpos = len(k.L)
    k("""
    s_lshl_b32 s16, s2, 3
    v_and_b32 v1, 63, v0
    v_lshrrev_b32 v2, 6, v0
    v_and_b32 v5, 3, v0
    v_mul_u32_u24 v6, %d, v5
    v_lshrrev_b32 v7, 2, v0
    v_lshl_add_u32 v8, v5, 1, s16
    v_lshlrev_b32 v8, 3, v8
    """ % REG_PITCH)
    regs = []
    for it in range(9):
        a = pool.get(); b = pool.get(); assert b == a + 2 and a % 4 == 0
        regs.append(a)
        k("v_add_u32 v9, %d, v7" % (64 * it))
        k("v_lshl_add_u32 v9, v9, 14, v8")
        k("buffer_load_dwordx4 v[%d:%d], v9, s[12:15], 0 offen" % (a, a + 3))
    k("""
    v_lshl_add_u32 v3, v2, 1, s16
    v_lshlrev_b32 v3, 11, v3
    v_lshl_add_u32 v3, v1, 1, v3
    v_mul_u32_u24 v4, %d, v2
    """ % REG_PITCH)
    XR = list(range(120, 152))
    for i in range(16):
        k("buffer_load_ushort v%d, v3, s[8:11], 0 offen offset:%d" % (XR[2 * i], i * 128))
        k("buffer_load_ushort v%d, v3, s[8:11], 0 offen offset:%d" % (XR[2 * i + 1], 2048 + i * 128))
    k("s_waitcnt vmcnt(32)")
    for it in range(9):
        a = regs[it]
        k("v_add_u32 v9, %d, v7" % (64 * it))
        if it in (0, 8):
            k("v_and_b32 v10, 511, v9")
            k("v_cmp_eq_u32 vcc, 0, v10")
            k("v_cndmask_b32 v%d, v%d, 0, vcc" % (a + 1, a + 1))
            k("v_cndmask_b32 v%d, v%d, 0, vcc" % (a + 3, a + 3))
        k("v_sub_f32 v112, v%d, v%d" % (a, a + 3))
        k("v_add_f32 v113, v%d, v%d" % (a + 1, a + 2))
        k("v_add_f32 v114, v%d, v%d" % (a, a + 3))
        k("v_sub_f32 v115, v%d, v%d" % (a + 2, a + 1))
        padA(k, 10, 9)
        k("v_add_u32 v10, v10, v6")
        k("v_sub_u32 v11, 1024, v9")
        k("v_and_b32 v11, 1023, v11")
        padA(k, 12, 11)
        k("v_add_u32 v12, v12, v6")
        if it == 8:
            k("v_cmp_ge_u32 vcc, 512, v9")
            k("s_and_saveexec_b64 s[32:33], vcc")
        k("ds_write_b64 v10, v[112:113]")
        k("ds_write_b64 v12, v[114:115]")
        if it == 8:
            k("s_mov_b64 exec, s[32:33]")
        pool.put(a); pool.put(a + 2)
    k("s_waitcnt lgkmcnt(0)")
    k("s_barrier")
    k("v_lshl_add_u32 v6, v1, 3, v4")
    X = []
    for j in range(16):
        r = pool.get(); X.append(r)
        k("ds_read_b64 %s, v6 offset:%d" % (P(r), j * 68 * 8))
    k("s_waitcnt lgkmcnt(0)")
    out = row_fft_passes(k, cg, X, True, 1, 4, (5, 6, 7, 8))
    k("s_waitcnt vmcnt(0)")
    Z = [None] * 16
    for q in range(4):
        for j0 in range(4): Z[q + 4 * j0] = out[q][j0]
    k("s_mov_b32 s34, %s" % f2h(2.0 ** -22))
    for i in range(16):
        z = Z[i]
        k("v_mul_f32 v%d, s34, v%d" % (z, z))
        k("v_mul_f32 v%d, s34, v%d" % (z + 1, z + 1))
        k("v_cvt_pk_bf16_f32 v9, v%d, v%d" % (z, z + 1))
        k("v_lshlrev_b32 v%d, 16, v9" % z)
        k("v_and_b32 v%d, 0xffff0000, v9" % (z + 1))
        k("v_lshlrev_b32 v%d, 16, v%d" % (XR[2 * i], XR[2 * i]))
        k("v_lshlrev_b32 v%d, 16, v%d" % (XR[2 * i + 1], XR[2 * i + 1]))
        k("v_add_f32 v%d, v%d, v%d" % (z, z, XR[2 * i]))
        k("v_add_f32 v%d, v%d, v%d" % (z + 1, z + 1, XR[2 * i + 1]))
        k("v_cvt_pk_bf16_f32 v%d, v%d, v%d" % (XR[2 * i], z, z + 1))
        k("v_lshlrev_b32 v%d, 16, v%d" % (z, XR[2 * i]))
        k("v_and_b32 v%d, 0xffff0000, v%d" % (z + 1, XR[2 * i]))
        k("buffer_store_short v%d, v3, s[24:27], 0 offen offset:%d" % (XR[2 * i], i * 128))
        k("buffer_store_short_d16_hi v%d, v3, s[24:27], 0 offen offset:%d" % (XR[2 * i], 2048 + i * 128))
    xa = [z for z in Z]; xb = [z + 1 for z in Z]
    layernorm_regs(k, xa, 5, 6, 20, 21)
    layernorm_regs(k, xb, 7, 8, 22, 23)
    layernorm_finish(k, xa, 5, 6, 9, 20)
    layernorm_finish(k, xb, 7, 8, 10, 22)
    for i in range(16):
        k("buffer_store_short_d16_hi v%d, v3, s[28:31], 0 offen offset:%d" % (Z[i], i * 128))
        k("buffer_store_short_d16_hi v%d, v3, s[28:31], 0 offen offset:%d" % (Z[i] + 1, 2048 + i * 128))
    k("fc_end:")
    k("s_endpgm")
    k.L[cpos:cpos] = ["    " + l for l in cg.const_init()]
    return k, 4 * REG_PITCH

if __name__ == "__main__":
    ka, la = kernel_a(); kb, lb = kernel_b(); kc, lc = kernel_c()
    make_file([(ka, 256, 256, la), (kb, 513, 256, lb), (kc, 256, 256, lc)], "fft.s")
```

```python
from fftgen import *
from kfft import WS_H, WS_LN2, WS_ACT

M_ = 2048

def gemm_kernel(name, K, N, BN, NB, mode):
    k = Kern(name)
    BM = 128; BK = 64
    NS = K // BK
    NJ = BN // 32
    NI = 4
    WCH = BN // 8
    XB = BM * 128
    WB = BK * BN * 2
    STG = XB + WB
    nWd = (BK * WCH) // 64 // 4
    nXd = 4
    ND = nXd + nWd
    pitchW = BN * 2
    v = 8
    acc = [[v + 4 * (i * NJ + j) for j in range(NJ)] for i in range(NI)]; v += 4 * NI * NJ
    WF = [[v + 4 * (s * NJ + j) for j in range(NJ)] for s in range(2)]; v += 8 * NJ
    XF = [[v + 4 * (s * NI + i) for i in range(NI)] for s in range(2)]; v += 8 * NI
    vX = [[v + 2 * b + s for s in range(2)] for b in range(NB)]; v += 2 * NB
    vW = [[v + NJ * b + j for j in range(NJ)] for b in range(NB)]; v += NJ * NB
    vDX = v; v += 1
    vDW = [v + u for u in range(nWd)]; v += nWd
    v = (v + 1) // 2 * 2
    vE = v
    if mode == 1:
        k("s_load_dwordx4 s[4:7], s[0:1], 32")
    else:
        k("s_load_dwordx4 s[4:7], s[0:1], 48")
    k("""
    s_load_dwordx2 s[16:17], s[0:1], 72
    s_cmp_ge_u32 s2, 256
    s_cbranch_scc1 %s_end
    s_waitcnt lgkmcnt(0)
    """ % name)
    srd(k, 8, 4, K * N * 2)
    srd(k, 12, 16, M_ * K * 2, WS_LN2 if mode == 1 else WS_ACT)
    if mode == 1:
        srd(k, 20, 6, N * 2)
        srd(k, 24, 16, M_ * N * 2, WS_ACT)
    else:
        srd(k, 20, 16, M_ * N * 2, WS_H)
        srd(k, 24, 6, M_ * N * 2)
    if mode == 1:
        k("""
        s_and_b32 s28, s2, 7
        s_lshr_b32 s29, s2, 3
        s_and_b32 s30, s28, 1
        s_lshl_b32 s30, s30, 3
        s_and_b32 s31, s29, 7
        s_add_u32 s30, s30, s31
        s_lshr_b32 s31, s28, 1
        s_lshl_b32 s31, s31, 2
        s_lshr_b32 s32, s29, 3
        s_add_u32 s31, s31, s32
        """)
    else:
        k("""
        s_and_b32 s28, s2, 7
        s_lshr_b32 s29, s2, 3
        s_and_b32 s30, s28, 3
        s_lshl_b32 s30, s30, 2
        s_and_b32 s31, s29, 3
        s_add_u32 s30, s30, s31
        s_lshr_b32 s31, s28, 2
        s_lshl_b32 s31, s31, 3
        s_lshr_b32 s32, s29, 2
        s_add_u32 s31, s31, s32
        """)
    k("s_lshl_b32 s33, s30, 7")
    k("s_mul_i32 s34, s31, %d" % BN)
    k("""
    v_and_b32 v1, 63, v0
    v_lshrrev_b32 v2, 6, v0
    v_and_b32 v3, 15, v1
    v_lshrrev_b32 v4, 4, v1
    """)
    k("v_readfirstlane_b32 s35, v2")
    k("""
    v_lshrrev_b32 v5, 3, v1
    v_and_b32 v6, 7, v1
    v_xor_b32 v6, v6, v5
    v_lshl_add_u32 v5, v2, 5, v5
    v_add_u32 v5, s33, v5
    s_mov_b32 s36, %d
    v_mul_lo_u32 v5, v5, s36
    v_lshl_add_u32 v%d, v6, 4, v5
    """ % (K * 2, vDX))
    magic = (65536 + WCH - 1) // WCH
    for L in range(BK * WCH): assert (L * magic) >> 16 == L // WCH
    k("s_lshl_b32 s37, s34, 1")
    k("s_mov_b32 s38, %d" % (N * 2))
    for u in range(nWd):
        k("v_mul_u32_u24 v5, %d, v2" % (nWd * 64))
        k("v_add_u32 v5, v5, v1")
        k("v_add_u32 v5, %d, v5" % (u * 64))
        k("v_mul_u32_u24 v6, %d, v5" % magic)
        k("v_lshrrev_b32 v6, 16, v6")
        k("v_mul_u32_u24 v7, %d, v6" % WCH)
        k("v_sub_u32 v5, v5, v7")
        if mode == 1:
            k("v_bfe_u32 v7, v6, 3, 1")
            k("v_lshlrev_b32 v7, 1, v7")
        else:
            k("v_bfe_u32 v7, v6, 3, 1")
            k("v_lshlrev_b32 v7, 2, v7")
            k("v_and_b32 v%d, 2, v6" % vDW[u])
            k("v_or_b32 v7, v7, v%d" % vDW[u])
        k("v_xor_b32 v5, v5, v7")
        k("v_mul_lo_u32 v6, v6, s38")
        k("v_lshl_add_u32 v5, v5, 4, v6")
        k("v_add_u32 v%d, s37, v5" % vDW[u])
    k("v_and_b32 v5, 1, v2")
    k("v_lshl_add_u32 v5, v5, 6, v3")
    k("v_lshlrev_b32 v5, 7, v5")
    k("v_and_b32 v6, 7, v1")
    for s in range(2):
        k("v_or_b32 v7, %d, v4" % (4 * s))
        k("v_xor_b32 v7, v7, v6")
        k("v_lshl_add_u32 v7, v7, 4, v5")
        for b in range(NB):
            k("v_add_u32 v%d, %d, v7" % (vX[b][s], b * STG))
    k("v_lshrrev_b32 v5, 2, v3")
    k("v_lshl_add_u32 v6, v4, 3, v5")
    k("v_mul_u32_u24 v6, %d, v6" % pitchW)
    k("v_and_b32 v7, 3, v1")
    k("v_lshl_add_u32 v6, v7, 3, v6")
    k("v_and_b32 v7, 1, v4")
    if mode == 1:
        k("v_lshlrev_b32 v7, 1, v7")
    else:
        k("v_lshlrev_b32 v7, 2, v7")
        k("v_and_b32 v5, 2, v5")
        k("v_or_b32 v7, v7, v5")
    k("v_lshrrev_b32 v5, 1, v2")
    k("v_mul_u32_u24 v5, %d, v5" % (NJ * 2))
    for j in range(NJ):
        k("v_add_u32 v%d, %d, v5" % (vE, 2 * j))
        k("v_xor_b32 v%d, v%d, v7" % (vE, vE))
        k("v_lshl_add_u32 v%d, v%d, 4, v6" % (vE, vE))
        for b in range(NB):
            k("v_add_u32 v%d, %d, v%d" % (vW[b][j], b * STG + XB, vE))
    k("s_lshl_b32 s40, s35, 12")
    k("s_mul_i32 s41, s35, %d" % (nWd * 1024))
    k("s_add_u32 s41, s41, %d" % XB)
    issued = [0]
    def dma(st):
        b = st % NB
        for u in range(nXd):
            k("s_add_u32 m0, s40, %d" % (b * STG + u * 1024))
            k("s_mov_b32 s42, %d" % (st * 128 + u * 8 * K * 2))
            k("buffer_load_dwordx4 v%d, s[12:15], s42 offen lds" % vDX)
        for u in range(nWd):
            k("s_add_u32 m0, s41, %d" % (b * STG + u * 1024))
            k("s_mov_b32 s42, %d" % (st * BK * N * 2))
            k("buffer_load_dwordx4 v%d, s[8:11], s42 offen lds" % vDW[u])
        issued[0] = st + 1
    def reads(st, ks):
        b = st % NB
        n = 0
        for j in range(NJ):
            for half in range(2):
                k("ds_read_b64_tr_b16 v[%d:%d], v%d offset:%d" % (WF[ks][j] + 2 * half, WF[ks][j] + 2 * half + 1, vW[b][j],
                                                                   (ks * 32 + half * 4) * pitchW)); n += 1
        for i in range(NI):
            k("ds_read_b128 v[%d:%d], v%d offset:%d" % (XF[ks][i], XF[ks][i] + 3, vX[b][ks], i * 2048)); n += 1
        return n
    def mfmas(ks, first):
        for i in range(NI):
            for j in range(NJ):
                a = acc[i][j]
                c = "0" if first else "v[%d:%d]" % (a, a + 3)
                k("v_mfma_f32_16x16x32_bf16 v[%d:%d], v[%d:%d], v[%d:%d], %s" % (a, a + 3, WF[ks][j], WF[ks][j] + 3,
                                                                                 XF[ks][i], XF[ks][i] + 3, c))
    for st in range(min(NB, NS)): dma(st)
    k("s_waitcnt vmcnt(%d)" % ((issued[0] - 1) * ND))
    k("s_barrier")
    reads(0, 0)
    for st in range(NS):
        n1 = reads(st, 1)
        k("s_waitcnt lgkmcnt(%d)" % min(n1, 15))
        mfmas(0, st == 0)
        if st + 1 < NS:
            k("s_waitcnt vmcnt(%d) lgkmcnt(0)" % ((issued[0] - (st + 2)) * ND))
            k("s_barrier")
            reads(st + 1, 0)
            if st + NB < NS: dma(st + NB)
        else:
            k("s_waitcnt lgkmcnt(0)")
        mfmas(1, False)
    k("v_and_b32 v5, 1, v2")
    k("v_lshl_add_u32 v5, v5, 6, v3")
    k("v_add_u32 v5, s33, v5")
    k("s_mov_b32 s36, %d" % (N * 2))
    k("v_mul_lo_u32 v5, v5, s36")
    k("v_lshrrev_b32 v6, 1, v2")
    k("v_mul_u32_u24 v6, %d, v6" % (NJ * 16))
    k("v_lshl_add_u32 v6, v4, 2, v6")
    k("v_add_u32 v6, s34, v6")
    k("v_lshlrev_b32 v6, 1, v6")
    k("v_add_u32 v5, v5, v6")
    e = WF[0][0]
    if mode == 1:
        B = [e + 4 * j for j in range(NJ)]; e += 4 * NJ
        for j in range(NJ):
            k("buffer_load_dwordx2 v[%d:%d], v6, s[20:23], 0 offen offset:%d" % (B[j], B[j] + 1, j * 32))
        k("s_waitcnt vmcnt(0)")
        for j in range(NJ):
            k("v_and_b32 v%d, 0xffff0000, v%d" % (B[j] + 3, B[j] + 1))
            k("v_lshlrev_b32 v%d, 16, v%d" % (B[j] + 2, B[j] + 1))
            k("v_and_b32 v%d, 0xffff0000, v%d" % (B[j] + 1, B[j]))
            k("v_lshlrev_b32 v%d, 16, v%d" % (B[j], B[j]))
        T = e; e += 12
        k("s_mov_b32 s44, %s" % f2h(-1.4426950408889634))
        k("s_mov_b32 s45, %s" % f2h(0.6931471805599453))
        k("s_mov_b32 s46, %s" % f2h(2.0 ** -10))
        k("s_mov_b32 s47, %s" % f2h(-2 * 1.4426950408889634))
        k("s_mov_b32 s48, %s" % f2h(0.125))
        k("s_mov_b32 s49, %s" % f2h(2.0 / 15))
        k("s_mov_b32 s50, %s" % f2h(-1.0 / 3))
        def rnd2(a, b, t):
            k("v_cvt_pk_bf16_f32 v%d, v%d, v%d" % (t, a, b))
            k("v_lshlrev_b32 v%d, 16, v%d" % (a, t))
            k("v_and_b32 v%d, 0xffff0000, v%d" % (b, t))
        for i in range(NI):
            for j in range(NJ):
                a0 = acc[i][j]
                for p in range(2):
                    a, b = a0 + 2 * p, a0 + 2 * p + 1
                    t, e1, e2, u1, u2, w1, w2, x1, x2 = T, T + 1, T + 2, T + 3, T + 4, T + 5, T + 6, T + 7, T + 8
                    rnd2(a, b, t)
                    k("v_add_f32 v%d, v%d, v%d" % (a, a, B[j] + 2 * p))
                    k("v_add_f32 v%d, v%d, v%d" % (b, b, B[j] + 2 * p + 1))
                    rnd2(a, b, t)
                    k("v_mul_f32 v%d, s44, abs(v%d)" % (e1, a))
                    k("v_mul_f32 v%d, s44, abs(v%d)" % (e2, b))
                    k("v_exp_f32 v%d, v%d" % (e1, e1))
                    k("v_exp_f32 v%d, v%d" % (e2, e2))
                    rnd2(e1, e2, t)
                    k("v_add_f32 v%d, 1.0, v%d" % (u1, e1))
                    k("v_add_f32 v%d, 1.0, v%d" % (u2, e2))
                    k("v_log_f32 v%d, v%d" % (u1, u1))
                    k("v_log_f32 v%d, v%d" % (u2, u2))
                    k("v_fma_f32 v%d, v%d, -0.5, 1.0" % (w1, e1))
                    k("v_fma_f32 v%d, v%d, -0.5, 1.0" % (w2, e2))
                    k("v_mul_f32 v%d, s45, v%d" % (u1, u1))
                    k("v_mul_f32 v%d, s45, v%d" % (u2, u2))
                    k("v_mul_f32 v%d, v%d, v%d" % (w1, w1, e1))
                    k("v_mul_f32 v%d, v%d, v%d" % (w2, w2, e2))
                    k("v_cmp_gt_f32 vcc, s46, v%d" % e1)
                    k("v_cndmask_b32 v%d, v%d, v%d, vcc" % (u1, u1, w1))
                    k("v_cmp_gt_f32 vcc, s46, v%d" % e2)
                    k("v_cndmask_b32 v%d, v%d, v%d, vcc" % (u2, u2, w2))
                    rnd2(u1, u2, t)
                    k("v_max_f32 v%d, 0, v%d" % (w1, a))
                    k("v_max_f32 v%d, 0, v%d" % (w2, b))
                    k("v_add_f32 v%d, v%d, v%d" % (u1, u1, w1))
                    k("v_add_f32 v%d, v%d, v%d" % (u2, u2, w2))
                    rnd2(u1, u2, t)
                    k("v_mul_f32 v%d, s47, v%d" % (e1, u1))
                    k("v_mul_f32 v%d, s47, v%d" % (e2, u2))
                    k("v_exp_f32 v%d, v%d" % (e1, e1))
                    k("v_exp_f32 v%d, v%d" % (e2, e2))
                    k("v_mul_f32 v%d, v%d, v%d" % (x1, u1, u1))
                    k("v_mul_f32 v%d, v%d, v%d" % (x2, u2, u2))
                    k("v_add_f32 v%d, 1.0, v%d" % (w1, e1))
                    k("v_add_f32 v%d, 1.0, v%d" % (w2, e2))
                    k("v_rcp_f32 v%d, v%d" % (w1, w1))
                    k("v_rcp_f32 v%d, v%d" % (w2, w2))
                    k("v_sub_f32 v%d, 1.0, v%d" % (e1, e1))
                    k("v_sub_f32 v%d, 1.0, v%d" % (e2, e2))
                    k("v_mul_f32 v%d, v%d, v%d" % (e1, e1, w1))
                    k("v_mul_f32 v%d, v%d, v%d" % (e2, e2, w2))
                    k("v_mov_b32 v%d, s50" % (t))
                    k("v_fma_f32 v%d, v%d, s49, v%d" % (w1, x1, t))
                    k("v_fma_f32 v%d, v%d, s49, v%d" % (w2, x2, t))
                    k("v_fma_f32 v%d, v%d, v%d, 1.0" % (w1, w1, x1))
                    k("v_fma_f32 v%d, v%d, v%d, 1.0" % (w2, w2, x2))
                    k("v_mul_f32 v%d, v%d, v%d" % (w1, w1, u1))
                    k("v_mul_f32 v%d, v%d, v%d" % (w2, w2, u2))
                    k("v_cmp_gt_f32 vcc, s48, v%d" % u1)
                    k("v_cndmask_b32 v%d, v%d, v%d, vcc" % (e1, e1, w1))
                    k("v_cmp_gt_f32 vcc, s48, v%d" % u2)
                    k("v_cndmask_b32 v%d, v%d, v%d, vcc" % (e2, e2, w2))
                    rnd2(e1, e2, t)
                    k("v_mul_f32 v%d, v%d, v%d" % (a, a, e1))
                    k("v_mul_f32 v%d, v%d, v%d" % (b, b, e2))
                    k("v_cvt_pk_bf16_f32 v%d, v%d, v%d" % (a0 + p, a, b))
                k("s_mov_b32 s43, %d" % (i * 16 * N * 2))
                k("buffer_store_dwordx2 v[%d:%d], v5, s[24:27], s43 offen offset:%d" % (a0, a0 + 1, j * 32))
    else:
        H = [[e + 2 * (i * NJ + j) for j in range(NJ)] for i in range(NI)]; e += 2 * NI * NJ
        for i in range(NI):
            k("s_mov_b32 s43, %d" % (i * 16 * N * 2))
            for j in range(NJ):
                k("buffer_load_dwordx2 v[%d:%d], v5, s[20:23], s43 offen offset:%d" % (H[i][j], H[i][j] + 1, j * 32))
        k("s_waitcnt vmcnt(0)")
        T = e; e += 4
        for i in range(NI):
            for j in range(NJ):
                a0 = acc[i][j]; h = H[i][j]
                for p in range(2):
                    a, b = a0 + 2 * p, a0 + 2 * p + 1
                    k("v_cvt_pk_bf16_f32 v%d, v%d, v%d" % (T, a, b))
                    k("v_lshlrev_b32 v%d, 16, v%d" % (a, T))
                    k("v_and_b32 v%d, 0xffff0000, v%d" % (b, T))
                    k("v_lshlrev_b32 v%d, 16, v%d" % (T + 1, h + p))
                    k("v_and_b32 v%d, 0xffff0000, v%d" % (T + 2, h + p))
                    k("v_add_f32 v%d, v%d, v%d" % (a, a, T + 1))
                    k("v_add_f32 v%d, v%d, v%d" % (b, b, T + 2))
                    k("v_cvt_pk_bf16_f32 v%d, v%d, v%d" % (a0 + p, a, b))
                k("s_mov_b32 s43, %d" % (i * 16 * N * 2))
                k("buffer_store_dwordx2 v[%d:%d], v5, s[24:27], s43 offen offset:%d" % (a0, a0 + 1, j * 32))
    k("%s_end:" % name)
    k("s_endpgm")
    return k, NB * STG

if __name__ == "__main__":
    import kfft
    ka, la = kfft.kernel_a(); kb, lb = kfft.kernel_b(); kc, lc = kfft.kernel_c()
    g1, l1 = gemm_kernel("gemm1_kernel", 1024, 3584, 224, 3, 1)
    g2, l2 = gemm_kernel("gemm2_kernel", 3584, 1024, 64, 6, 2)
    make_file([(ka, 256, 256, la), (kb, 513, 256, lb), (kc, 256, 256, lc), (g1, 256, 256, l1), (g2, 256, 256, l2)], "full.s")
```

```python
from fftgen import *

WS_X1T = 0
X1T_BYTES = 513 * 2048 * 8
WS_H = 16 << 20
WS_LN2 = 24 << 20
WS_ACT = 32 << 20
WS_WT = 48 << 20
WS_TAB = 60 << 20
REG_PITCH = 8704 + 64

def padA(k, dst, idx):
    k("v_lshrrev_b32 v%d, 6, v%d" % (dst, idx))
    k("v_lshl_add_u32 v%d, v%d, 2, v%d" % (dst, dst, idx))
    k("v_lshlrev_b32 v%d, 3, v%d" % (dst, dst))

def padoffA(i): return (i + 4 * (i >> 6)) * 8

def row_fft_passes(k, cg, X, inv, vlane, vbase, vt):
    pool = cg.pool
    vf, va, tmp, vr = vt
    Y = cg.dft(X, inv)
    k("v_cvt_f32_u32 v%d, v%d" % (vf, vlane))
    Y = cg.twiddle(Y, vf, 1024, inv, tmp)
    k("v_lshl_add_u32 v%d, v%d, 3, v%d" % (va, vlane, vbase))
    for k1 in range(16):
        k("ds_write_b64 v%d, %s offset:%d" % (va, P(Y[k1]), k1 * 68 * 8))
        pool.put(Y[k1])
    k("v_lshrrev_b32 v%d, 2, v%d" % (va, vlane))
    k("v_mul_u32_u24 v%d, 68, v%d" % (va, va))
    k("v_and_b32 v%d, 3, v%d" % (vr, vlane))
    k("v_add_u32 v%d, v%d, v%d" % (va, va, vr))
    k("v_lshl_add_u32 v%d, v%d, 3, v%d" % (va, va, vbase))
    X = []
    for m in range(16):
        r = pool.get(); X.append(r)
        k("ds_read_b64 %s, v%d offset:%d" % (P(r), va, m * 32))
    k("s_waitcnt lgkmcnt(0)")
    Y = cg.dft(X, inv)
    k("v_cvt_f32_u32 v%d, v%d" % (vf, vr))
    Y = cg.twiddle(Y, vf, 64, inv, tmp)
    for j1 in range(16):
        k("ds_write_b64 v%d, %s offset:%d" % (va, P(Y[j1]), j1 * 32))
        pool.put(Y[j1])
    k("v_and_b32 v%d, 15, v%d" % (va, vlane))
    k("v_mul_u32_u24 v%d, 68, v%d" % (va, va))
    k("v_lshrrev_b32 v%d, 4, v%d" % (vr, vlane))
    k("v_lshl_add_u32 v%d, v%d, 2, v%d" % (va, vr, va))
    k("v_lshl_add_u32 v%d, v%d, 3, v%d" % (va, va, vbase))
    XX = []
    for q in range(4):
        rs = []
        for e in range(4):
            r = pool.get(); rs.append(r)
            k("ds_read_b64 %s, v%d offset:%d" % (P(r), va, q * 128 + e * 8))
        XX.append(rs)
    k("s_waitcnt lgkmcnt(0)")
    out = []
    for q in range(4):
        out.append(cg.dft(XX[q], inv))
    return out

def mish_scalar(k, a, T):
    t, e1, u1, w1, x1 = T, T + 1, T + 2, T + 3, T + 4
    k("s_mov_b32 s52, %s" % f2h(-1.4426950408889634))
    k("s_mov_b32 s53, %s" % f2h(0.6931471805599453))
    k("s_mov_b32 s54, %s" % f2h(2.0 ** -10))
    k("s_mov_b32 s55, %s" % f2h(-2 * 1.4426950408889634))
    k("s_mov_b32 s56, %s" % f2h(0.125))
    k("s_mov_b32 s57, %s" % f2h(2.0 / 15))
    k("s_mov_b32 s58, %s" % f2h(-1.0 / 3))
    k("v_mul_f32 v%d, s52, abs(v%d)" % (e1, a))
    k("v_exp_f32 v%d, v%d" % (e1, e1))
    bf16_round(k, e1)
    k("v_add_f32 v%d, 1.0, v%d" % (u1, e1))
    k("v_log_f32 v%d, v%d" % (u1, u1))
    k("v_fma_f32 v%d, v%d, -0.5, 1.0" % (w1, e1))
    k("v_mul_f32 v%d, s53, v%d" % (u1, u1))
    k("v_mul_f32 v%d, v%d, v%d" % (w1, w1, e1))
    k("v_cmp_gt_f32 vcc, s54, v%d" % e1)
    k("v_cndmask_b32 v%d, v%d, v%d, vcc" % (u1, u1, w1))
    bf16_round(k, u1)
    k("v_max_f32 v%d, 0, v%d" % (w1, a))
    k("v_cmp_u_f32 vcc, v%d, v%d" % (a, a))
    k("v_cndmask_b32 v%d, v%d, v%d, vcc" % (w1, w1, a))
    k("v_add_f32 v%d, v%d, v%d" % (u1, u1, w1))
    bf16_round(k, u1)
    k("v_mul_f32 v%d, s55, v%d" % (e1, u1))
    k("v_exp_f32 v%d, v%d" % (e1, e1))
    k("v_mul_f32 v%d, v%d, v%d" % (x1, u1, u1))
    k("v_add_f32 v%d, 1.0, v%d" % (w1, e1))
    k("v_rcp_f32 v%d, v%d" % (w1, w1))
    k("v_sub_f32 v%d, 1.0, v%d" % (e1, e1))
    k("v_mul_f32 v%d, v%d, v%d" % (e1, e1, w1))
    k("v_mov_b32 v%d, s58" % t)
    k("v_fma_f32 v%d, v%d, s57, v%d" % (w1, x1, t))
    k("v_fma_f32 v%d, v%d, v%d, 1.0" % (w1, w1, x1))
    k("v_mul_f32 v%d, v%d, v%d" % (w1, w1, u1))
    k("v_cmp_gt_f32 vcc, s56, v%d" % u1)
    k("v_cndmask_b32 v%d, v%d, v%d, vcc" % (e1, e1, w1))
    bf16_round(k, e1)
    k("v_mul_f32 v%d, v%d, v%d" % (a, a, e1))
    bf16_round(k, a)

def kernel_a():
    k = Kern("fft_a_kernel")
    pool = Pool(16, 112)
    cg = CG(k, pool, 40)
    k("""
    s_load_dwordx2 s[4:5], s[0:1], 0
    s_load_dwordx2 s[6:7], s[0:1], 72
    s_load_dwordx4 s[64:67], s[0:1], 8
    s_cmp_ge_u32 s2, 256
    s_cbranch_scc1 fa_end
    s_waitcnt lgkmcnt(0)
    """)
    srd(k, 8, 4, 2048 * 1024 * 2)
    srd(k, 12, 6, X1T_BYTES)
    srd(k, 24, 64, 2048 * 513 * 2)
    srd(k, 28, 66, 2048 * 513 * 2)
    srd(k, 32, 6, X1T_BYTES, WS_WT)
    srd(k, 36, 6, 131072, WS_TAB)
    cpos = len(k.L)
    k("""
    v_and_b32 v1, 63, v0
    v_lshrrev_b32 v2, 6, v0
    s_lshl_b32 s16, s2, 3
    v_lshl_add_u32 v3, v2, 1, s16
    v_lshlrev_b32 v3, 11, v3
    v_lshl_add_u32 v3, v1, 1, v3
    """)
    X = [pool.get() for _ in range(16)]
    for j in range(16):
        k("buffer_load_ushort v%d, v3, s[8:11], 0 offen offset:%d" % (X[j], j * 128))
        k("buffer_load_ushort v%d, v3, s[8:11], 0 offen offset:%d" % (X[j] + 1, 2048 + j * 128))
    k("""
    v_and_b32 v5, 3, v0
    v_lshrrev_b32 v7, 2, v0
    v_lshl_add_u32 v8, v5, 1, s16
    v_mul_u32_u24 v9, 1026, v8
    v_lshl_add_u32 v9, v7, 1, v9
    v_lshlrev_b32 v8, 3, v8
    """)
    WQ = []
    for it in range(9):
        a = pool.get(); b = pool.get(); assert b == a + 2 and a % 4 == 0
        WQ.append(a)
        k("buffer_load_ushort v%d, v9, s[24:27], 0 offen offset:%d" % (a, it * 128))
        k("buffer_load_ushort v%d, v9, s[28:31], 0 offen offset:%d" % (a + 1, it * 128))
        k("buffer_load_ushort v%d, v9, s[24:27], 0 offen offset:%d" % (a + 2, it * 128 + 1026))
        k("buffer_load_ushort v%d, v9, s[28:31], 0 offen offset:%d" % (a + 3, it * 128 + 1026))
    k("s_lshl_b32 s17, s2, 8")
    k("v_add_u32 v10, s17, v0")
    k("v_lshlrev_b32 v112, 16, v10")
    mish_scalar(k, 112, 113)
    k("v_lshlrev_b32 v10, 1, v10")
    k("buffer_store_short_d16_hi v112, v10, s[36:39], 0 offen")
    k("s_waitcnt vmcnt(1)")
    for it in range(9):
        a = WQ[it]
        for q in range(4): k("v_lshlrev_b32 v%d, 16, v%d" % (a + q, a + q))
        k("v_add_u32 v10, %d, v7" % (64 * it))
        k("v_lshl_add_u32 v10, v10, 14, v8")
        k("buffer_store_dwordx4 v[%d:%d], v10, s[32:35], 0 offen" % (a, a + 3))
        pool.put(a); pool.put(a + 2)
    k("v_mul_u32_u24 v4, %d, v2" % REG_PITCH)
    for j in range(16):
        k("v_lshlrev_b32 v%d, 16, v%d" % (X[j], X[j]))
        k("v_lshlrev_b32 v%d, 16, v%d" % (X[j] + 1, X[j] + 1))
    xa = [r for r in X]; xb = [r + 1 for r in X]
    layernorm_regs(k, xa, 5, 6, 20, 21)
    layernorm_regs(k, xb, 7, 8, 22, 23)
    layernorm_finish(k, xa, 5, 6, 9, 20)
    layernorm_finish(k, xb, 7, 8, 10, 22)
    out = row_fft_passes(k, cg, X, False, 1, 4, (5, 6, 7, 8))
    k("v_lshl_add_u32 v6, v1, 3, v4")
    for q in range(4):
        for j0 in range(4):
            k("ds_write_b64 v6, %s offset:%d" % (P(out[q][j0]), 68 * 8 * (q + 4 * j0)))
            pool.put(out[q][j0])
    k("s_waitcnt lgkmcnt(0)")
    k("s_barrier")
    k("""
    v_and_b32 v5, 3, v0
    v_mul_u32_u24 v6, %d, v5
    v_lshrrev_b32 v7, 2, v0
    v_lshl_add_u32 v8, v5, 1, s16
    v_lshlrev_b32 v8, 3, v8
    """ % REG_PITCH)
    regs = []
    for it in range(9):
        a = pool.get(); b = pool.get()
        regs.append((a, b))
        k("v_add_u32 v9, %d, v7" % (64 * it))
        padA(k, 10, 9)
        k("v_add_u32 v10, v10, v6")
        k("ds_read_b64 %s, v10" % P(a))
        k("v_sub_u32 v11, 1024, v9")
        k("v_and_b32 v11, 1023, v11")
        padA(k, 12, 11)
        k("v_add_u32 v12, v12, v6")
        k("ds_read_b64 %s, v12" % P(b))
    k("s_waitcnt lgkmcnt(0)")
    for it in range(9):
        a, b = regs[it]
        o = 112 + 4 * (it % 2)
        k("v_add_f32 v%d, v%d, v%d" % (o, a, b))
        k("v_sub_f32 v%d, v%d, v%d" % (o + 1, a + 1, b + 1))
        k("v_add_f32 v%d, v%d, v%d" % (o + 2, a + 1, b + 1))
        k("v_sub_f32 v%d, v%d, v%d" % (o + 3, b, a))
        k("v_add_u32 v9, %d, v7" % (64 * it))
        k("v_lshl_add_u32 v9, v9, 14, v8")
        k("buffer_store_dwordx4 v[%d:%d], v9, s[12:15], 0 offen" % (o, o + 3))
    k("fa_end:")
    k("s_endpgm")
    k.L[cpos:cpos] = ["    " + l for l in cg.const_init()]
    return k, 4 * REG_PITCH

def kernel_b():
    k = Kern("fft_b_kernel")
    pool = Pool(24, 120)
    cg = CG(k, pool, 40)
    k("""
    s_load_dwordx4 s[4:7], s[0:1], 8
    s_load_dwordx2 s[16:17], s[0:1], 72
    s_cmp_ge_u32 s2, 513
    s_cbranch_scc1 fb_end
    s_waitcnt lgkmcnt(0)
    """)
    srd(k, 8, 16, X1T_BYTES, WS_WT)
    srd(k, 20, 16, X1T_BYTES)
    cpos = len(k.L)
    k("s_lshl_b32 s24, s2, 14")
    k("v_lshlrev_b32 v1, 3, v0")
    X = [pool.get() for _ in range(8)]
    for j in range(8):
        k("s_add_u32 s25, s24, %d" % (j * 2048))
        k("buffer_load_dwordx2 %s, v1, s[20:23], s25 offen" % P(X[j]))
    k("""
    v_lshrrev_b32 v2, 6, v0
    v_bfe_u32 v3, v0, 3, 3
    v_lshl_add_u32 v2, v3, 3, v2
    v_and_b32 v3, 7, v0
    v_lshl_add_u32 v2, v3, 6, v2
    v_lshlrev_b32 v2, 3, v2
    """)
    W = [[pool.get() for _ in range(4)] for _ in range(2)]
    for h in range(2):
        for k4 in range(4):
            k("s_add_u32 s25, s24, %d" % ((4 * h + 512 * k4) * 8))
            k("buffer_load_dwordx2 %s, v2, s[8:11], s25 offen" % P(W[h][k4]))
    vf, va, tmp, vr = 4, 5, 6, 7
    def addr_pass(ps):
        if ps == 1:
            k("v_lshrrev_b32 v%d, 5, v0" % va)
            k("v_lshl_add_u32 v%d, v%d, 2, v0" % (va, va))
            k("v_lshlrev_b32 v%d, 3, v%d" % (va, va))
            k("v_cvt_f32_u32 v%d, v0" % vf)
            return [j * 288 * 8 for j in range(8)]
        if ps == 2:
            k("v_lshrrev_b32 v%d, 5, v0" % va)
            k("v_mul_u32_u24 v%d, 288, v%d" % (va, va))
            k("v_and_b32 v%d, 31, v0" % vr)
            k("v_add_u32 v%d, v%d, v%d" % (va, va, vr))
            k("v_lshlrev_b32 v%d, 3, v%d" % (va, va))
            k("v_cvt_f32_u32 v%d, v%d" % (vf, vr))
            return [j * 36 * 8 for j in range(8)]
        if ps == 3:
            k("v_lshrrev_b32 v%d, 2, v0" % va)
            k("v_mul_u32_u24 v%d, 36, v%d" % (va, va))
            k("v_and_b32 v%d, 3, v0" % vr)
            k("v_add_u32 v%d, v%d, v%d" % (va, va, vr))
            k("v_lshlrev_b32 v%d, 3, v%d" % (va, va))
            k("v_cvt_f32_u32 v%d, v%d" % (vf, vr))
            return [j * 4 * 8 for j in range(8)]
        if ps == 4:
            k("v_lshrrev_b32 v%d, 3, v0" % va)
            k("v_add_u32 v%d, v%d, v0" % (va, va))
            k("v_lshlrev_b32 v%d, 5, v%d" % (va, va))
            return [(h * 1152 + e) * 8 for h in range(2) for e in range(4)]
    def wr(Y, offs):
        for j in range(8):
            k("ds_write_b64 v%d, %s offset:%d" % (va, P(Y[j]), offs[j])); pool.put(Y[j])
        k("s_waitcnt lgkmcnt(0)")
        k("s_barrier")
    def rd(offs):
        X = []
        for j in range(8):
            r = pool.get(); X.append(r)
            k("ds_read_b64 %s, v%d offset:%d" % (P(r), va, offs[j]))
        k("s_waitcnt lgkmcnt(0)")
        return X
    offs = addr_pass(1)
    k("s_waitcnt vmcnt(8)")
    Y = cg.dft(X, False); Y = cg.twiddle(Y, vf, 2048, False, tmp); wr(Y, offs)
    for ps, M in ((2, 256), (3, 32)):
        offs = addr_pass(ps)
        X = rd(offs); Y = cg.dft(X, False); Y = cg.twiddle(Y, vf, M, False, tmp); wr(Y, offs)
    offs = addr_pass(4)
    X = rd(offs)
    k("s_waitcnt vmcnt(0)")
    Y = []
    for h in range(2):
        o = cg.dft(X[4 * h:4 * h + 4], False)
        for k4 in range(4):
            w = W[h][k4]
            o[k4] = cg.mulv(o[k4], w); pool.put(w)
        Y += cg.dft(o, True)
    wr(Y, offs)
    for ps, M in ((3, 32), (2, 256)):
        offs = addr_pass(ps)
        X = rd(offs); X = cg.twiddle(X, vf, M, True, tmp); Y = cg.dft(X, True); wr(Y, offs)
    offs = addr_pass(1)
    X = rd(offs); X = cg.twiddle(X, vf, 2048, True, tmp); Y = cg.dft(X, True)
    for j in range(8):
        k("s_add_u32 s25, s24, %d" % (j * 2048))
        k("buffer_store_dwordx2 %s, v1, s[20:23], s25 offen" % P(Y[j]))
    k("fb_end:")
    k("s_endpgm")
    k.L[cpos:cpos] = ["    " + l for l in cg.const_init()]
    return k, 2304 * 8

def kernel_c():
    k = Kern("fft_c_kernel")
    pool = Pool(16, 112)
    cg = CG(k, pool, 40)
    k("""
    s_load_dwordx2 s[4:5], s[0:1], 0
    s_load_dwordx2 s[6:7], s[0:1], 72
    s_cmp_ge_u32 s2, 256
    s_cbranch_scc1 fc_end
    s_waitcnt lgkmcnt(0)
    """)
    srd(k, 8, 4, 2048 * 1024 * 2)
    srd(k, 12, 6, X1T_BYTES)
    srd(k, 24, 6, 2048 * 1024 * 2, WS_H)
    srd(k, 28, 6, 2048 * 1024 * 2, WS_LN2)
    cpos = len(k.L)
    k("""
    s_lshl_b32 s16, s2, 3
    v_and_b32 v1, 63, v0
    v_lshrrev_b32 v2, 6, v0
    v_and_b32 v5, 3, v0
    v_mul_u32_u24 v6, %d, v5
    v_lshrrev_b32 v7, 2, v0
    v_lshl_add_u32 v8, v5, 1, s16
    v_lshlrev_b32 v8, 3, v8
    """ % REG_PITCH)
    regs = []
    for it in range(9):
        a = pool.get(); b = pool.get(); assert b == a + 2 and a % 4 == 0
        regs.append(a)
        k("v_add_u32 v9, %d, v7" % (64 * it))
        k("v_lshl_add_u32 v9, v9, 14, v8")
        k("buffer_load_dwordx4 v[%d:%d], v9, s[12:15], 0 offen" % (a, a + 3))
    k("""
    v_lshl_add_u32 v3, v2, 1, s16
    v_lshlrev_b32 v3, 11, v3
    v_lshl_add_u32 v3, v1, 1, v3
    v_mul_u32_u24 v4, %d, v2
    """ % REG_PITCH)
    XR = list(range(120, 152))
    for i in range(16):
        k("buffer_load_ushort v%d, v3, s[8:11], 0 offen offset:%d" % (XR[2 * i], i * 128))
        k("buffer_load_ushort v%d, v3, s[8:11], 0 offen offset:%d" % (XR[2 * i + 1], 2048 + i * 128))
    k("s_waitcnt vmcnt(32)")
    for it in range(9):
        a = regs[it]
        k("v_add_u32 v9, %d, v7" % (64 * it))
        if it in (0, 8):
            k("v_and_b32 v10, 511, v9")
            k("v_cmp_eq_u32 vcc, 0, v10")
            k("v_cndmask_b32 v%d, v%d, 0, vcc" % (a + 1, a + 1))
            k("v_cndmask_b32 v%d, v%d, 0, vcc" % (a + 3, a + 3))
        k("v_sub_f32 v112, v%d, v%d" % (a, a + 3))
        k("v_add_f32 v113, v%d, v%d" % (a + 1, a + 2))
        k("v_add_f32 v114, v%d, v%d" % (a, a + 3))
        k("v_sub_f32 v115, v%d, v%d" % (a + 2, a + 1))
        padA(k, 10, 9)
        k("v_add_u32 v10, v10, v6")
        k("v_sub_u32 v11, 1024, v9")
        k("v_and_b32 v11, 1023, v11")
        padA(k, 12, 11)
        k("v_add_u32 v12, v12, v6")
        if it == 8:
            k("v_cmp_ge_u32 vcc, 512, v9")
            k("s_and_saveexec_b64 s[32:33], vcc")
        k("ds_write_b64 v10, v[112:113]")
        k("ds_write_b64 v12, v[114:115]")
        if it == 8:
            k("s_mov_b64 exec, s[32:33]")
        pool.put(a); pool.put(a + 2)
    k("s_waitcnt lgkmcnt(0)")
    k("s_barrier")
    k("v_lshl_add_u32 v6, v1, 3, v4")
    X = []
    for j in range(16):
        r = pool.get(); X.append(r)
        k("ds_read_b64 %s, v6 offset:%d" % (P(r), j * 68 * 8))
    k("s_waitcnt lgkmcnt(0)")
    out = row_fft_passes(k, cg, X, True, 1, 4, (5, 6, 7, 8))
    k("s_waitcnt vmcnt(0)")
    Z = [None] * 16
    for q in range(4):
        for j0 in range(4): Z[q + 4 * j0] = out[q][j0]
    k("s_mov_b32 s34, %s" % f2h(2.0 ** -22))
    for i in range(16):
        z = Z[i]
        k("v_mul_f32 v%d, s34, v%d" % (z, z))
        k("v_mul_f32 v%d, s34, v%d" % (z + 1, z + 1))
        k("v_cvt_pk_bf16_f32 v9, v%d, v%d" % (z, z + 1))
        k("v_lshlrev_b32 v%d, 16, v9" % z)
        k("v_and_b32 v%d, 0xffff0000, v9" % (z + 1))
        k("v_lshlrev_b32 v%d, 16, v%d" % (XR[2 * i], XR[2 * i]))
        k("v_lshlrev_b32 v%d, 16, v%d" % (XR[2 * i + 1], XR[2 * i + 1]))
        k("v_add_f32 v%d, v%d, v%d" % (z, z, XR[2 * i]))
        k("v_add_f32 v%d, v%d, v%d" % (z + 1, z + 1, XR[2 * i + 1]))
        k("v_cvt_pk_bf16_f32 v%d, v%d, v%d" % (XR[2 * i], z, z + 1))
        k("v_lshlrev_b32 v%d, 16, v%d" % (z, XR[2 * i]))
        k("v_and_b32 v%d, 0xffff0000, v%d" % (z + 1, XR[2 * i]))
        k("buffer_store_short v%d, v3, s[24:27], 0 offen offset:%d" % (XR[2 * i], i * 128))
        k("buffer_store_short_d16_hi v%d, v3, s[24:27], 0 offen offset:%d" % (XR[2 * i], 2048 + i * 128))
    xa = [z for z in Z]; xb = [z + 1 for z in Z]
    layernorm_regs(k, xa, 5, 6, 20, 21)
    layernorm_regs(k, xb, 7, 8, 22, 23)
    layernorm_finish(k, xa, 5, 6, 9, 20)
    layernorm_finish(k, xb, 7, 8, 10, 22)
    for i in range(16):
        k("buffer_store_short_d16_hi v%d, v3, s[28:31], 0 offen offset:%d" % (Z[i], i * 128))
        k("buffer_store_short_d16_hi v%d, v3, s[28:31], 0 offen offset:%d" % (Z[i] + 1, 2048 + i * 128))
    k("fc_end:")
    k("s_endpgm")
    k.L[cpos:cpos] = ["    " + l for l in cg.const_init()]
    return k, 4 * REG_PITCH

if __name__ == "__main__":
    ka, la = kernel_a(); kb, lb = kernel_b(); kc, lc = kernel_c()
    make_file([(ka, 256, 256, la), (kb, 513, 256, lb), (kc, 256, 256, lc)], "fft.s")
```

```python
from fftgen import *
from kfft import WS_H, WS_LN2, WS_ACT, WS_TAB

M_ = 2048

def gemm_kernel(name, K, N, BN, NB, mode, dbg=0, NWM=4, NWN=2):
    k = Kern(name)
    BM = 128; BK = 64
    NW = NWM * NWN
    NS = K // BK
    NI = BM // 16 // NWM; NJ = BN // 16 // NWN
    WCH = BN // 8
    XB = BM * 128
    nXd = 16 // NW
    nWblk = BK * WCH // 64
    nWd = (nWblk + NW - 1) // NW
    WB = nWd * NW * 1024
    STG = XB + WB
    pitchW = BN * 2
    v = 8
    acc = [[v + 4 * (i * NJ + j) for j in range(NJ)] for i in range(NI)]; v += 4 * NI * NJ
    WF = [[v + 4 * (s * NJ + j) for j in range(NJ)] for s in range(2)]; v += 8 * NJ
    XF = [[v + 4 * (s * NI + i) for i in range(NI)] for s in range(2)]; v += 8 * NI
    v = max(v, WF[0][0] + 4 * NJ + 16)
    vX = [[v + 2 * b + s for s in range(2)] for b in range(NB)]; v += 2 * NB
    vW = [[v + NJ * b + j for j in range(NJ)] for b in range(NB)]; v += NJ * NB
    vDX = [v + u for u in range(nXd)]; v += nXd
    vDW = [v + u for u in range(nWd)]; v += nWd
    vDum = v; vE = v + 1; v += 2
    if mode == 1:
        k("s_load_dwordx4 s[4:7], s[0:1], 32")
    else:
        k("s_load_dwordx4 s[4:7], s[0:1], 48")
    k("""
    s_load_dwordx2 s[16:17], s[0:1], 72
    s_cmp_ge_u32 s2, %d
    s_cbranch_scc1 %s_end
    s_waitcnt lgkmcnt(0)
    """ % (16 * (N // BN), name))
    srd(k, 8, 4, K * N * 2)
    srd(k, 12, 16, M_ * K * 2, WS_LN2 if mode == 1 else WS_ACT)
    if mode == 1:
        srd(k, 20, 6, N * 2)
        srd(k, 24, 16, M_ * N * 2, WS_ACT)
        srd(k, 52, 16, 131072, WS_TAB)
    else:
        srd(k, 20, 16, M_ * N * 2, WS_H)
        srd(k, 24, 6, M_ * N * 2)
    if mode == 1:
        k("""
        s_and_b32 s28, s2, 7
        s_lshr_b32 s29, s2, 3
        s_and_b32 s30, s28, 1
        s_lshl_b32 s30, s30, 3
        s_and_b32 s31, s29, 7
        s_add_u32 s30, s30, s31
        s_lshr_b32 s31, s28, 1
        s_lshl_b32 s31, s31, 2
        s_lshr_b32 s32, s29, 3
        s_add_u32 s31, s31, s32
        """)
    else:
        k("""
        s_and_b32 s28, s2, 7
        s_lshr_b32 s29, s2, 3
        s_and_b32 s30, s28, 3
        s_lshl_b32 s30, s30, 2
        s_and_b32 s31, s29, 3
        s_add_u32 s30, s30, s31
        s_lshr_b32 s31, s28, 2
        s_lshl_b32 s31, s31, %d
        s_lshr_b32 s32, s29, 2
        s_add_u32 s31, s31, s32
        """ % (3 if BN == 64 else 2))
    k("s_lshl_b32 s33, s30, 7")
    k("s_mul_i32 s34, s31, %d" % BN)
    k("""
    v_and_b32 v1, 63, v0
    v_lshrrev_b32 v2, 6, v0
    v_and_b32 v3, 15, v1
    v_lshrrev_b32 v4, 4, v1
    v_readfirstlane_b32 s35, v2
    """)
    k("""
    v_lshrrev_b32 v5, 3, v1
    v_and_b32 v6, 7, v1
    v_xor_b32 v6, v6, v5
    v_lshl_add_u32 v5, v2, %d, v5
    v_add_u32 v5, s33, v5
    s_mov_b32 s36, %d
    v_mul_lo_u32 v5, v5, s36
    v_lshl_add_u32 v5, v6, 4, v5
    """ % ({1: 3, 2: 4, 4: 5}[nXd], K * 2))
    for u in range(nXd):
        k("v_add_u32 v%d, %d, v5" % (vDX[u], u * 8 * K * 2 - u * 1024 + 4096))
    magic = (65536 + WCH - 1) // WCH
    for L in range(nWd * NW * 64): assert (L * magic) >> 16 == L // WCH
    k("s_lshl_b32 s37, s34, 1")
    k("s_mov_b32 s38, %d" % (N * 2))
    for u in range(nWd):
        k("v_mul_u32_u24 v5, %d, v2" % (nWd * 64))
        k("v_add_u32 v5, v5, v1")
        k("v_add_u32 v5, %d, v5" % (u * 64))
        k("v_mul_u32_u24 v6, %d, v5" % magic)
        k("v_lshrrev_b32 v6, 16, v6")
        k("v_mul_u32_u24 v7, %d, v6" % WCH)
        k("v_sub_u32 v%d, v5, v7" % vE)
        k("v_bfe_u32 v7, v6, 3, 1")
        if BN == 224:
            k("v_lshlrev_b32 v7, 1, v7")
        elif BN == 64:
            k("v_lshlrev_b32 v7, 2, v7")
            k("v_and_b32 v%d, 2, v6" % vDum)
            k("v_or_b32 v7, v7, v%d" % vDum)
        else:
            k("v_lshlrev_b32 v7, 3, v7")
            k("v_and_b32 v%d, 3, v6" % vDum)
            k("v_lshl_add_u32 v7, v%d, 1, v7" % vDum)
        k("v_xor_b32 v%d, v%d, v7" % (vE, vE))
        k("v_mul_lo_u32 v6, v6, s38")
        k("v_lshl_add_u32 v6, v%d, 4, v6" % vE)
        k("v_add_u32 v6, s37, v6")
        k("v_add_u32 v6, %d, v6" % (4096 - (u % 4) * 1024))
        if nWd * NW > nWblk:
            k("v_cmp_le_u32 vcc, %d, v5" % (nWblk * 64))
            k("v_mov_b32 v7, 0x7fffffff")
            k("v_cndmask_b32 v6, v6, v7, vcc")
        k("v_mov_b32 v%d, v6" % vDW[u])
    k("s_sub_u32 s8, s8, 4096")
    k("s_subb_u32 s9, s9, 0")
    k("s_add_u32 s10, s10, 4096")
    k("s_sub_u32 s12, s12, 4096")
    k("s_subb_u32 s13, s13, 0")
    k("s_add_u32 s14, s14, 4096")
    k("v_and_b32 v5, %d, v2" % (NWM - 1))
    k("v_mul_u32_u24 v5, %d, v5" % (NI * 16))
    k("v_add_u32 v5, v5, v3")
    k("v_lshlrev_b32 v5, 7, v5")
    k("v_and_b32 v6, 7, v1")
    for s in range(2):
        k("v_or_b32 v7, %d, v4" % (4 * s))
        k("v_xor_b32 v7, v7, v6")
        k("v_lshl_add_u32 v7, v7, 4, v5")
        for b in range(NB):
            k("v_add_u32 v%d, %d, v7" % (vX[b][s], b * STG))
    k("v_lshrrev_b32 v5, 2, v3")
    k("v_lshl_add_u32 v6, v4, 3, v5")
    k("v_mul_u32_u24 v6, %d, v6" % pitchW)
    k("v_and_b32 v7, 3, v1")
    k("v_lshl_add_u32 v6, v7, 3, v6")
    k("v_and_b32 v7, 1, v4")
    if BN == 224:
        k("v_lshlrev_b32 v7, 1, v7")
    elif BN == 64:
        k("v_lshlrev_b32 v7, 2, v7")
        k("v_and_b32 v5, 2, v5")
        k("v_or_b32 v7, v7, v5")
    else:
        k("v_lshlrev_b32 v7, 3, v7")
        k("v_lshl_add_u32 v7, v5, 1, v7")
    k("v_lshrrev_b32 v5, %d, v2" % {1: 0, 2: 1, 4: 2}[NWM])
    k("v_mul_u32_u24 v5, %d, v5" % (NJ * 2))
    for j in range(NJ):
        k("v_add_u32 v%d, %d, v5" % (vE, 2 * j))
        k("v_xor_b32 v%d, v%d, v7" % (vE, vE))
        k("v_lshl_add_u32 v%d, v%d, 4, v6" % (vE, vE))
        for b in range(NB):
            k("v_add_u32 v%d, %d, v%d" % (vW[b][j], b * STG + XB, vE))
    k("s_mul_i32 s40, s35, %d" % (nXd * 1024))
    k("s_mul_i32 s41, s35, %d" % (nWd * 1024))
    k("s_add_u32 s41, s41, %d" % XB)
    k("s_lshl_b32 s56, s35, 10")
    k("s_lshr_b32 s57, s2, 3")
    k("s_cmp_ge_u32 s57, %d" % NS)
    k("s_cselect_b32 s58, %d, 0" % NS)
    k("s_sub_u32 s57, s57, s58")
    vm = []
    def vwait(tag, extra=""):
        idx = max(i for i, t in enumerate(vm) if t == tag)
        n = len(vm) - 1 - idx
        assert n <= 63
        k("s_waitcnt vmcnt(%d)%s" % (n, extra))
    def dma(st):
        b = st % NB
        if dbg & 2 and st >= NB:
            vm.append(st); k("buffer_load_dword v%d, v%d, s[12:15], 0 offen" % (vDum, vDX[0])); return
        k("s_add_u32 m0, s40, %d" % (b * STG))
        k("s_lshl_b32 s42, s57, 7")
        k("s_mul_i32 s43, s57, %d" % (BK * N * 2))
        for u in range(nXd):
            k("buffer_load_dwordx4 v%d, s[12:15], s42 offen offset:%d lds" % (vDX[u], u * 1024)); vm.append(st)
        k("s_add_u32 s57, s57, 1")
        k("s_cmp_eq_u32 s57, %d" % NS)
        k("s_cselect_b32 s57, 0, s57")
        for u in range(nWd):
            if u % 4 == 0: k("s_add_u32 m0, s41, %d" % (b * STG + u * 1024))
            k("buffer_load_dwordx4 v%d, s[8:11], s43 offen offset:%d lds" % (vDW[u], (u % 4) * 1024)); vm.append(st)
    def reads(st, ks):
        b = st % NB
        for j in range(NJ):
            for half in range(2):
                k("ds_read_b64_tr_b16 v[%d:%d], v%d offset:%d" % (WF[ks][j] + 2 * half, WF[ks][j] + 2 * half + 1, vW[b][j],
                                                                   (ks * 32 + half * 4) * pitchW))
        for i in range(NI):
            k("ds_read_b128 v[%d:%d], v%d offset:%d" % (XF[ks][i], XF[ks][i] + 3, vX[b][ks], i * 2048))
    def mfmas(ks, first):
        if dbg & 4 and not first: return
        for i in range(NI):
            for j in range(NJ):
                a = acc[i][j]
                c = "0" if first else "v[%d:%d]" % (a, a + 3)
                k("v_mfma_f32_16x16x32_bf16 v[%d:%d], v[%d:%d], v[%d:%d], %s" % (a, a + 3, WF[ks][j], WF[ks][j] + 3,
                                                                                 XF[ks][i], XF[ks][i] + 3, c))
    def tabload(b):
        lo = b * STG; hi = min((b + 1) * STG, 131072)
        n = (hi - lo) // 1024
        assert n % NW == 0
        for u in range(n // NW):
            k("s_add_u32 m0, s56, %d" % (lo + u * NW * 1024))
            k("s_mov_b32 s42, m0")
            k("buffer_load_dwordx4 v%d, s[52:55], s42 offen lds" % vDum); vm.append("tab")
    def capture(fn, *a):
        save = k.L; k.L = []
        fn(*a)
        out = k.L; k.L = save
        return out
    def groups(lines):
        gs = []; cur = []
        for l in lines:
            cur.append(l)
            op = l.split()[0]
            if op.startswith("buffer_") or op.startswith("ds_") or op.startswith("v_"):
                gs.append(cur); cur = []
        if cur: gs.append(cur)
        return gs
    def interleave(mf, others):
        gs = groups(others)
        n = len(mf); m = len(gs); gi = 0
        for idx, l in enumerate(mf):
            k.L.append(l)
            tgt = (m * (idx + 1) + n - 1) // n if n else m
            while gi < min(tgt, m):
                k.L.extend(gs[gi]); gi += 1
        while gi < m:
            k.L.extend(gs[gi]); gi += 1
    for st in range(min(NB, NS)): dma(st)
    vwait(0)
    k("s_barrier")
    reads(0, 0)
    for st in range(NS):
        k("s_waitcnt lgkmcnt(0)")
        interleave(capture(mfmas, 0, st == 0), capture(reads, st, 1))
        if st + 1 < NS:
            vwait(st + 1, " lgkmcnt(0)")
            k("s_barrier")
            oth = capture(reads, st + 1, 0)
            if st + NB < NS:
                oth += capture(dma, st + NB)
            elif mode == 1:
                if st + NB == NS: k("v_lshlrev_b32 v%d, 4, v1" % vDum)
                oth += capture(tabload, st % NB)
            interleave(capture(mfmas, 1, False), oth)
        else:
            k("s_waitcnt lgkmcnt(0)")
            mfmas(1, False)
    if mode == 1:
        k("s_barrier")
        tabload((NS - 1) % NB)
    k("v_and_b32 v5, %d, v2" % (NWM - 1))
    k("v_mul_u32_u24 v5, %d, v5" % (NI * 16))
    k("v_add_u32 v5, v5, v3")
    k("v_add_u32 v5, s33, v5")
    k("s_mov_b32 s36, %d" % (N * 2))
    k("v_mul_lo_u32 v5, v5, s36")
    k("v_lshrrev_b32 v6, %d, v2" % {1: 0, 2: 1, 4: 2}[NWM])
    k("v_mul_u32_u24 v6, %d, v6" % (NJ * 16))
    k("v_lshl_add_u32 v6, v4, 2, v6")
    k("v_add_u32 v6, s34, v6")
    k("v_lshlrev_b32 v6, 1, v6")
    k("v_add_u32 v5, v5, v6")
    e = WF[0][0]
    if mode == 1:
        B = [e + 4 * j for j in range(NJ)]; e += 4 * NJ
        for j in range(NJ):
            k("buffer_load_dwordx2 v[%d:%d], v6, s[20:23], 0 offen offset:%d" % (B[j], B[j] + 1, j * 32))
        k("s_waitcnt vmcnt(0)")
        k("s_barrier")
        for j in range(NJ):
            k("v_and_b32 v%d, 0xffff0000, v%d" % (B[j] + 3, B[j] + 1))
            k("v_lshlrev_b32 v%d, 16, v%d" % (B[j] + 2, B[j] + 1))
            k("v_and_b32 v%d, 0xffff0000, v%d" % (B[j] + 1, B[j]))
            k("v_lshlrev_b32 v%d, 16, v%d" % (B[j], B[j]))
        T = e; e += 4
        pend = []
        for i in range(NI):
            for j in range(NJ):
                a0 = acc[i][j]
                for p in range(2):
                    a, b = a0 + 2 * p, a0 + 2 * p + 1
                    t = T + p
                    k("v_cvt_pk_bf16_f32 v%d, v%d, v%d" % (t, a, b))
                    k("v_lshlrev_b32 v%d, 16, v%d" % (a, t))
                    k("v_and_b32 v%d, 0xffff0000, v%d" % (b, t))
                    k("v_pk_add_f32 v[%d:%d], v[%d:%d], v[%d:%d]" % (a, b, a, b, B[j] + 2 * p, B[j] + 2 * p + 1))
                    k("v_cvt_pk_bf16_f32 v%d, v%d, v%d" % (t, a, b))
                    k("v_lshlrev_b32 v%d, 1, v%d" % (a, t))
                    k("v_and_b32 v%d, 0x1fffe, v%d" % (a, a))
                    k("v_lshrrev_b32 v%d, 15, v%d" % (b, t))
                    k("v_and_b32 v%d, 0x1fffe, v%d" % (b, b))
                for p in range(2):
                    a, b = a0 + 2 * p, a0 + 2 * p + 1
                    k("ds_read_u16 v%d, v%d" % (a, a))
                    k("ds_read_u16_d16_hi v%d, v%d" % (b, b))
                pend.append((i, j))
                if len(pend) == 3 or (i == NI - 1 and j == NJ - 1):
                    k("s_waitcnt lgkmcnt(0)")
                    for (ii, jj) in pend:
                        aa = acc[ii][jj]
                        k("v_or_b32 v%d, v%d, v%d" % (aa, aa, aa + 1))
                        k("v_or_b32 v%d, v%d, v%d" % (aa + 1, aa + 2, aa + 3))
                        k("s_mov_b32 s43, %d" % (ii * 16 * N * 2))
                        k("buffer_store_dwordx2 v[%d:%d], v5, s[24:27], s43 offen offset:%d" % (aa, aa + 1, jj * 32))
                    pend = []
    else:
        H = [[e + 2 * (i * NJ + j) for j in range(NJ)] for i in range(NI)]; e += 2 * NI * NJ
        for i in range(NI):
            k("s_mov_b32 s43, %d" % (i * 16 * N * 2))
            for j in range(NJ):
                k("buffer_load_dwordx2 v[%d:%d], v5, s[20:23], s43 offen offset:%d" % (H[i][j], H[i][j] + 1, j * 32))
        k("s_waitcnt vmcnt(0)")
        T = e; e += 4
        for i in range(NI):
            for j in range(NJ):
                a0 = acc[i][j]; h = H[i][j]
                for p in range(2):
                    a, b = a0 + 2 * p, a0 + 2 * p + 1
                    k("v_cvt_pk_bf16_f32 v%d, v%d, v%d" % (T, a, b))
                    k("v_lshlrev_b32 v%d, 16, v%d" % (a, T))
                    k("v_and_b32 v%d, 0xffff0000, v%d" % (b, T))
                    k("v_lshlrev_b32 v%d, 16, v%d" % (T + 1, h + p))
                    k("v_and_b32 v%d, 0xffff0000, v%d" % (T + 2, h + p))
                    k("v_add_f32 v%d, v%d, v%d" % (a, a, T + 1))
                    k("v_add_f32 v%d, v%d, v%d" % (b, b, T + 2))
                    k("v_cvt_pk_bf16_f32 v%d, v%d, v%d" % (a0 + p, a, b))
                k("s_mov_b32 s43, %d" % (i * 16 * N * 2))
                k("buffer_store_dwordx2 v[%d:%d], v5, s[24:27], s43 offen offset:%d" % (a0, a0 + 1, j * 32))
    k("%s_end:" % name)
    k("s_endpgm")
    return k, NB * STG, NW * 64

if __name__ == "__main__":
    import kfft, sys
    outf = sys.argv[1] if len(sys.argv) > 1 else "full.s"
    dbg = int(sys.argv[2]) if len(sys.argv) > 2 else 0
    ka, la = kfft.kernel_a(); kb, lb = kfft.kernel_b(); kc, lc = kfft.kernel_c()
    g1, l1, t1 = gemm_kernel("gemm1_kernel", 1024, 3584, 224, 3, 1, dbg)
    g2, l2, t2 = gemm_kernel("gemm2_kernel", 3584, 1024, 64, 6, 2, dbg)
    make_file([(ka, 256, 256, la), (kb, 513, 256, lb), (kc, 256, 256, lc), (g1, 256, t1, l1), (g2, 256, t2, l2)], outf)
```

```python
from fftgen import *

WS_X1T = 0
X1T_BYTES = 513 * 2048 * 8
WS_H = 16 << 20
WS_LN2 = 24 << 20
WS_ACT = 32 << 20
WS_WT = 48 << 20
WS_TAB = 60 << 20
WS_Y = 64 << 20
REG_PITCH = 8704 + 64

def padA(k, dst, idx):
    k("v_lshrrev_b32 v%d, 6, v%d" % (dst, idx))
    k("v_lshl_add_u32 v%d, v%d, 2, v%d" % (dst, dst, idx))
    k("v_lshlrev_b32 v%d, 3, v%d" % (dst, dst))

def padoffA(i): return (i + 4 * (i >> 6)) * 8

def row_fft_passes(k, cg, X, inv, vlane, vbase, vt):
    pool = cg.pool
    vf, va, tmp, vr = vt
    Y = cg.dft(X, inv)
    k("v_cvt_f32_u32 v%d, v%d" % (vf, vlane))
    Y = cg.twiddle(Y, vf, 1024, inv, tmp)
    k("v_lshl_add_u32 v%d, v%d, 3, v%d" % (va, vlane, vbase))
    for k1 in range(16):
        k("ds_write_b64 v%d, %s offset:%d" % (va, P(Y[k1]), k1 * 68 * 8))
        pool.put(Y[k1])
    k("v_lshrrev_b32 v%d, 2, v%d" % (va, vlane))
    k("v_mul_u32_u24 v%d, 68, v%d" % (va, va))
    k("v_and_b32 v%d, 3, v%d" % (vr, vlane))
    k("v_add_u32 v%d, v%d, v%d" % (va, va, vr))
    k("v_lshl_add_u32 v%d, v%d, 3, v%d" % (va, va, vbase))
    X = []
    for m in range(16):
        r = pool.get(); X.append(r)
        k("ds_read_b64 %s, v%d offset:%d" % (P(r), va, m * 32))
    k("s_waitcnt lgkmcnt(0)")
    Y = cg.dft(X, inv)
    k("v_cvt_f32_u32 v%d, v%d" % (vf, vr))
    Y = cg.twiddle(Y, vf, 64, inv, tmp)
    for j1 in range(16):
        k("ds_write_b64 v%d, %s offset:%d" % (va, P(Y[j1]), j1 * 32))
        pool.put(Y[j1])
    k("v_and_b32 v%d, 15, v%d" % (va, vlane))
    k("v_mul_u32_u24 v%d, 68, v%d" % (va, va))
    k("v_lshrrev_b32 v%d, 4, v%d" % (vr, vlane))
    k("v_lshl_add_u32 v%d, v%d, 2, v%d" % (va, vr, va))
    k("v_lshl_add_u32 v%d, v%d, 3, v%d" % (va, va, vbase))
    XX = []
    for q in range(4):
        rs = []
        for e in range(4):
            r = pool.get(); rs.append(r)
            k("ds_read_b64 %s, v%d offset:%d" % (P(r), va, q * 128 + e * 8))
        XX.append(rs)
    k("s_waitcnt lgkmcnt(0)")
    out = []
    for q in range(4):
        out.append(cg.dft(XX[q], inv))
    return out

def mish_scalar(k, a, T):
    t, e1, u1, w1, x1 = T, T + 1, T + 2, T + 3, T + 4
    k("s_mov_b32 s52, %s" % f2h(-1.4426950408889634))
    k("s_mov_b32 s53, %s" % f2h(0.6931471805599453))
    k("s_mov_b32 s54, %s" % f2h(2.0 ** -10))
    k("s_mov_b32 s55, %s" % f2h(-2 * 1.4426950408889634))
    k("s_mov_b32 s56, %s" % f2h(0.125))
    k("s_mov_b32 s57, %s" % f2h(2.0 / 15))
    k("s_mov_b32 s58, %s" % f2h(-1.0 / 3))
    k("v_mul_f32 v%d, s52, abs(v%d)" % (e1, a))
    k("v_exp_f32 v%d, v%d" % (e1, e1))
    bf16_round(k, e1)
    k("v_add_f32 v%d, 1.0, v%d" % (u1, e1))
    k("v_log_f32 v%d, v%d" % (u1, u1))
    k("v_fma_f32 v%d, v%d, -0.5, 1.0" % (w1, e1))
    k("v_mul_f32 v%d, s53, v%d" % (u1, u1))
    k("v_mul_f32 v%d, v%d, v%d" % (w1, w1, e1))
    k("v_cmp_gt_f32 vcc, s54, v%d" % e1)
    k("v_cndmask_b32 v%d, v%d, v%d, vcc" % (u1, u1, w1))
    bf16_round(k, u1)
    k("v_max_f32 v%d, 0, v%d" % (w1, a))
    k("v_cmp_u_f32 vcc, v%d, v%d" % (a, a))
    k("v_cndmask_b32 v%d, v%d, v%d, vcc" % (w1, w1, a))
    k("v_add_f32 v%d, v%d, v%d" % (u1, u1, w1))
    bf16_round(k, u1)
    k("v_mul_f32 v%d, s55, v%d" % (e1, u1))
    k("v_exp_f32 v%d, v%d" % (e1, e1))
    k("v_mul_f32 v%d, v%d, v%d" % (x1, u1, u1))
    k("v_add_f32 v%d, 1.0, v%d" % (w1, e1))
    k("v_rcp_f32 v%d, v%d" % (w1, w1))
    k("v_sub_f32 v%d, 1.0, v%d" % (e1, e1))
    k("v_mul_f32 v%d, v%d, v%d" % (e1, e1, w1))
    k("v_mov_b32 v%d, s58" % t)
    k("v_fma_f32 v%d, v%d, s57, v%d" % (w1, x1, t))
    k("v_fma_f32 v%d, v%d, v%d, 1.0" % (w1, w1, x1))
    k("v_mul_f32 v%d, v%d, v%d" % (w1, w1, u1))
    k("v_cmp_gt_f32 vcc, s56, v%d" % u1)
    k("v_cndmask_b32 v%d, v%d, v%d, vcc" % (e1, e1, w1))
    bf16_round(k, e1)
    k("v_mul_f32 v%d, v%d, v%d" % (a, a, e1))
    bf16_round(k, a)

def kernel_a():
    k = Kern("fft_a_kernel")
    pool = Pool(16, 112)
    cg = CG(k, pool, 40)
    k("""
    s_load_dwordx2 s[4:5], s[0:1], 0
    s_load_dwordx2 s[6:7], s[0:1], 72
    s_load_dwordx4 s[64:67], s[0:1], 8
    s_cmp_ge_u32 s2, 512
    s_cbranch_scc1 fa_end
    s_waitcnt lgkmcnt(0)
    """)
    srd(k, 8, 4, 2048 * 1024 * 2)
    srd(k, 12, 6, X1T_BYTES)
    srd(k, 24, 64, 2048 * 513 * 2)
    srd(k, 28, 66, 2048 * 513 * 2)
    srd(k, 32, 6, X1T_BYTES, WS_WT)
    srd(k, 36, 6, 131072, WS_TAB)
    k("s_cmp_ge_u32 s2, 256")
    k("s_cbranch_scc1 fa_aux")
    cpos = len(k.L)
    k("""
    v_and_b32 v1, 63, v0
    v_lshrrev_b32 v2, 6, v0
    s_lshl_b32 s16, s2, 3
    v_lshl_add_u32 v3, v2, 1, s16
    v_lshlrev_b32 v3, 11, v3
    v_lshl_add_u32 v3, v1, 1, v3
    """)
    X = [pool.get() for _ in range(16)]
    for j in range(16):
        k("buffer_load_ushort v%d, v3, s[8:11], 0 offen offset:%d" % (X[j], j * 128))
        k("buffer_load_ushort v%d, v3, s[8:11], 0 offen offset:%d" % (X[j] + 1, 2048 + j * 128))
    k("s_waitcnt vmcnt(0)")
    k("v_mul_u32_u24 v4, %d, v2" % REG_PITCH)
    for j in range(16):
        k("v_lshlrev_b32 v%d, 16, v%d" % (X[j], X[j]))
        k("v_lshlrev_b32 v%d, 16, v%d" % (X[j] + 1, X[j] + 1))
    xa = [r for r in X]; xb = [r + 1 for r in X]
    layernorm_regs(k, xa, 5, 6, 20, 21)
    layernorm_regs(k, xb, 7, 8, 22, 23)
    layernorm_finish(k, xa, 5, 6, 9, 20)
    layernorm_finish(k, xb, 7, 8, 10, 22)
    out = row_fft_passes(k, cg, X, False, 1, 4, (5, 6, 7, 8))
    k("v_lshl_add_u32 v6, v1, 3, v4")
    for q in range(4):
        for j0 in range(4):
            k("ds_write_b64 v6, %s offset:%d" % (P(out[q][j0]), 68 * 8 * (q + 4 * j0)))
            pool.put(out[q][j0])
    k("s_waitcnt lgkmcnt(0)")
    k("s_barrier")
    k("""
    v_and_b32 v5, 3, v0
    v_mul_u32_u24 v6, %d, v5
    v_lshrrev_b32 v7, 2, v0
    v_lshl_add_u32 v8, v5, 1, s16
    v_lshlrev_b32 v8, 3, v8
    """ % REG_PITCH)
    regs = []
    for it in range(9):
        a = pool.get(); b = pool.get()
        regs.append((a, b))
        k("v_add_u32 v9, %d, v7" % (64 * it))
        padA(k, 10, 9)
        k("v_add_u32 v10, v10, v6")
        k("ds_read_b64 %s, v10" % P(a))
        k("v_sub_u32 v11, 1024, v9")
        k("v_and_b32 v11, 1023, v11")
        padA(k, 12, 11)
        k("v_add_u32 v12, v12, v6")
        k("ds_read_b64 %s, v12" % P(b))
    k("s_waitcnt lgkmcnt(0)")
    for it in range(9):
        a, b = regs[it]
        o = 112 + 4 * (it % 2)
        k("v_add_f32 v%d, v%d, v%d" % (o, a, b))
        k("v_sub_f32 v%d, v%d, v%d" % (o + 1, a + 1, b + 1))
        k("v_add_f32 v%d, v%d, v%d" % (o + 2, a + 1, b + 1))
        k("v_sub_f32 v%d, v%d, v%d" % (o + 3, b, a))
        k("v_add_u32 v9, %d, v7" % (64 * it))
        k("v_lshl_add_u32 v9, v9, 14, v8")
        k("buffer_store_dwordx4 v[%d:%d], v9, s[12:15], 0 offen" % (o, o + 3))
    k("s_branch fa_end")
    k("fa_aux:")
    k("s_sub_u32 s2, s2, 256")
    k("s_lshl_b32 s16, s2, 3")
    k("""
    v_and_b32 v5, 3, v0
    v_lshrrev_b32 v7, 2, v0
    v_lshl_add_u32 v8, v5, 1, s16
    v_mul_u32_u24 v9, 1026, v8
    v_lshl_add_u32 v9, v7, 1, v9
    v_lshlrev_b32 v8, 3, v8
    """)
    WQ = []
    for it in range(9):
        a = pool.get(); b = pool.get(); assert b == a + 2 and a % 4 == 0
        WQ.append(a)
        k("buffer_load_ushort v%d, v9, s[24:27], 0 offen offset:%d" % (a, it * 128))
        k("buffer_load_ushort v%d, v9, s[28:31], 0 offen offset:%d" % (a + 1, it * 128))
        k("buffer_load_ushort v%d, v9, s[24:27], 0 offen offset:%d" % (a + 2, it * 128 + 1026))
        k("buffer_load_ushort v%d, v9, s[28:31], 0 offen offset:%d" % (a + 3, it * 128 + 1026))
    k("s_lshl_b32 s17, s2, 8")
    k("v_add_u32 v10, s17, v0")
    k("v_lshlrev_b32 v112, 16, v10")
    mish_scalar(k, 112, 113)
    k("v_lshlrev_b32 v10, 1, v10")
    k("buffer_store_short_d16_hi v112, v10, s[36:39], 0 offen")
    k("s_waitcnt vmcnt(1)")
    for it in range(9):
        a = WQ[it]
        for q in range(4): k("v_lshlrev_b32 v%d, 16, v%d" % (a + q, a + q))
        k("v_add_u32 v10, %d, v7" % (64 * it))
        k("v_lshl_add_u32 v10, v10, 14, v8")
        k("buffer_store_dwordx4 v[%d:%d], v10, s[32:35], 0 offen" % (a, a + 3))
        pool.put(a); pool.put(a + 2)
    k("fa_end:")
    k("s_endpgm")
    k.L[cpos:cpos] = ["    " + l for l in cg.const_init()]
    return k, 4 * REG_PITCH

def kernel_b():
    k = Kern("fft_b_kernel")
    pool = Pool(24, 120)
    cg = CG(k, pool, 40)
    k("""
    s_load_dwordx4 s[4:7], s[0:1], 8
    s_load_dwordx2 s[16:17], s[0:1], 72
    s_cmp_ge_u32 s2, 513
    s_cbranch_scc1 fb_end
    s_waitcnt lgkmcnt(0)
    """)
    srd(k, 8, 16, X1T_BYTES, WS_WT)
    srd(k, 20, 16, X1T_BYTES)
    srd(k, 12, 16, X1T_BYTES, WS_Y)
    cpos = len(k.L)
    k("s_lshl_b32 s24, s2, 14")
    k("v_lshlrev_b32 v1, 3, v0")
    X = [pool.get() for _ in range(8)]
    for j in range(8):
        k("s_add_u32 s25, s24, %d" % (j * 2048))
        k("buffer_load_dwordx2 %s, v1, s[20:23], s25 offen" % P(X[j]))
    k("""
    v_lshrrev_b32 v2, 6, v0
    v_bfe_u32 v3, v0, 3, 3
    v_lshl_add_u32 v2, v3, 3, v2
    v_and_b32 v3, 7, v0
    v_lshl_add_u32 v2, v3, 6, v2
    v_lshlrev_b32 v2, 3, v2
    """)
    W = [[pool.get() for _ in range(4)] for _ in range(2)]
    for h in range(2):
        for k4 in range(4):
            k("s_add_u32 s25, s24, %d" % ((4 * h + 512 * k4) * 8))
            k("buffer_load_dwordx2 %s, v2, s[8:11], s25 offen" % P(W[h][k4]))
    vf, va, tmp, vr = 4, 5, 6, 7
    def addr_pass(ps):
        if ps == 1:
            k("v_lshrrev_b32 v%d, 5, v0" % va)
            k("v_lshl_add_u32 v%d, v%d, 2, v0" % (va, va))
            k("v_lshlrev_b32 v%d, 3, v%d" % (va, va))
            k("v_cvt_f32_u32 v%d, v0" % vf)
            return [j * 288 * 8 for j in range(8)]
        if ps == 2:
            k("v_lshrrev_b32 v%d, 5, v0" % va)
            k("v_mul_u32_u24 v%d, 288, v%d" % (va, va))
            k("v_and_b32 v%d, 31, v0" % vr)
            k("v_add_u32 v%d, v%d, v%d" % (va, va, vr))
            k("v_lshlrev_b32 v%d, 3, v%d" % (va, va))
            k("v_cvt_f32_u32 v%d, v%d" % (vf, vr))
            return [j * 36 * 8 for j in range(8)]
        if ps == 3:
            k("v_lshrrev_b32 v%d, 2, v0" % va)
            k("v_mul_u32_u24 v%d, 36, v%d" % (va, va))
            k("v_and_b32 v%d, 3, v0" % vr)
            k("v_add_u32 v%d, v%d, v%d" % (va, va, vr))
            k("v_lshlrev_b32 v%d, 3, v%d" % (va, va))
            k("v_cvt_f32_u32 v%d, v%d" % (vf, vr))
            return [j * 4 * 8 for j in range(8)]
        if ps == 4:
            k("v_lshrrev_b32 v%d, 3, v0" % va)
            k("v_add_u32 v%d, v%d, v0" % (va, va))
            k("v_lshlrev_b32 v%d, 5, v%d" % (va, va))
            return [(h * 1152 + e) * 8 for h in range(2) for e in range(4)]
    def wr(Y, offs):
        for j in range(8):
            k("ds_write_b64 v%d, %s offset:%d" % (va, P(Y[j]), offs[j])); pool.put(Y[j])
        k("s_waitcnt lgkmcnt(0)")
        k("s_barrier")
    def rd(offs):
        X = []
        for j in range(8):
            r = pool.get(); X.append(r)
            k("ds_read_b64 %s, v%d offset:%d" % (P(r), va, offs[j]))
        k("s_waitcnt lgkmcnt(0)")
        return X
    offs = addr_pass(1)
    k("s_waitcnt vmcnt(8)")
    Y = cg.dft(X, False); Y = cg.twiddle(Y, vf, 2048, False, tmp); wr(Y, offs)
    for ps, M in ((2, 256), (3, 32)):
        offs = addr_pass(ps)
        X = rd(offs); Y = cg.dft(X, False); Y = cg.twiddle(Y, vf, M, False, tmp); wr(Y, offs)
    offs = addr_pass(4)
    X = rd(offs)
    k("s_waitcnt vmcnt(0)")
    Y = []
    for h in range(2):
        o = cg.dft(X[4 * h:4 * h + 4], False)
        for k4 in range(4):
            w = W[h][k4]
            o[k4] = cg.mulv(o[k4], w); pool.put(w)
        Y += cg.dft(o, True)
    wr(Y, offs)
    for ps, M in ((3, 32), (2, 256)):
        offs = addr_pass(ps)
        X = rd(offs); X = cg.twiddle(X, vf, M, True, tmp); Y = cg.dft(X, True); wr(Y, offs)
    offs = addr_pass(1)
    X = rd(offs); X = cg.twiddle(X, vf, 2048, True, tmp); Y = cg.dft(X, True)
    k("v_lshrrev_b32 v2, 3, v0")
    k("s_mov_b32 s26, %d" % (513 * 64))
    k("v_mul_lo_u32 v2, v2, s26")
    k("v_and_b32 v3, 7, v0")
    k("v_lshl_add_u32 v2, v3, 3, v2")
    k("s_lshl_b32 s27, s2, 6")
    for j in range(8):
        k("s_add_u32 s25, s27, %d" % (j * 32 * 513 * 64))
        k("buffer_store_dwordx2 %s, v2, s[12:15], s25 offen" % P(Y[j]))
    k("fb_end:")
    k("s_endpgm")
    k.L[cpos:cpos] = ["    " + l for l in cg.const_init()]
    return k, 2304 * 8

def kernel_c():
    k = Kern("fft_c_kernel")
    pool = Pool(16, 112)
    cg = CG(k, pool, 40)
    k("""
    s_load_dwordx2 s[4:5], s[0:1], 0
    s_load_dwordx2 s[6:7], s[0:1], 72
    s_cmp_ge_u32 s2, 256
    s_cbranch_scc1 fc_end
    s_waitcnt lgkmcnt(0)
    """)
    srd(k, 8, 4, 2048 * 1024 * 2)
    srd(k, 12, 6, X1T_BYTES, WS_Y)
    srd(k, 24, 6, 2048 * 1024 * 2, WS_H)
    srd(k, 28, 6, 2048 * 1024 * 2, WS_LN2)
    cpos = len(k.L)
    k("""
    s_lshl_b32 s16, s2, 3
    v_and_b32 v1, 63, v0
    v_lshrrev_b32 v2, 6, v0
    v_and_b32 v5, 3, v0
    v_mul_u32_u24 v6, %d, v5
    v_lshrrev_b32 v7, 2, v0
    v_lshlrev_b32 v13, 4, v0
    s_mul_i32 s17, s2, %d
    """ % (REG_PITCH, 513 * 64))
    for it in range(1, 9): k("s_add_u32 s%d, s17, %d" % (52 + it, it * 4096))
    regs = []
    for it in range(9):
        a = pool.get(); b = pool.get(); assert b == a + 2 and a % 4 == 0
        regs.append(a)
        k("buffer_load_dwordx4 v[%d:%d], v13, s[12:15], s17 offen offset:%d" % (a, a + 3, (it % 1) * 0)) if it == 0 else k("buffer_load_dwordx4 v[%d:%d], v13, s[12:15], s%d offen" % (a, a + 3, 52 + it))
    k("""
    v_lshl_add_u32 v3, v2, 1, s16
    v_lshlrev_b32 v3, 11, v3
    v_lshl_add_u32 v3, v1, 1, v3
    v_mul_u32_u24 v4, %d, v2
    """ % REG_PITCH)
    XR = list(range(120, 152))
    for i in range(16):
        k("buffer_load_ushort v%d, v3, s[8:11], 0 offen offset:%d" % (XR[2 * i], i * 128))
        k("buffer_load_ushort v%d, v3, s[8:11], 0 offen offset:%d" % (XR[2 * i + 1], 2048 + i * 128))
    k("s_waitcnt vmcnt(32)")
    for it in range(9):
        a = regs[it]
        k("v_add_u32 v9, %d, v7" % (64 * it))
        if it in (0, 8):
            k("v_and_b32 v10, 511, v9")
            k("v_cmp_eq_u32 vcc, 0, v10")
            k("v_cndmask_b32 v%d, v%d, 0, vcc" % (a + 1, a + 1))
            k("v_cndmask_b32 v%d, v%d, 0, vcc" % (a + 3, a + 3))
        k("v_sub_f32 v112, v%d, v%d" % (a, a + 3))
        k("v_add_f32 v113, v%d, v%d" % (a + 1, a + 2))
        k("v_add_f32 v114, v%d, v%d" % (a, a + 3))
        k("v_sub_f32 v115, v%d, v%d" % (a + 2, a + 1))
        padA(k, 10, 9)
        k("v_add_u32 v10, v10, v6")
        k("v_sub_u32 v11, 1024, v9")
        k("v_and_b32 v11, 1023, v11")
        padA(k, 12, 11)
        k("v_add_u32 v12, v12, v6")
        if it == 8:
            k("v_cmp_ge_u32 vcc, 512, v9")
            k("s_and_saveexec_b64 s[32:33], vcc")
        k("ds_write_b64 v10, v[112:113]")
        k("ds_write_b64 v12, v[114:115]")
        if it == 8:
            k("s_mov_b64 exec, s[32:33]")
        pool.put(a); pool.put(a + 2)
    k("s_waitcnt lgkmcnt(0)")
    k("s_barrier")
    k("v_lshl_add_u32 v6, v1, 3, v4")
    X = []
    for j in range(16):
        r = pool.get(); X.append(r)
        k("ds_read_b64 %s, v6 offset:%d" % (P(r), j * 68 * 8))
    k("s_waitcnt lgkmcnt(0)")
    out = row_fft_passes(k, cg, X, True, 1, 4, (5, 6, 7, 8))
    k("s_waitcnt vmcnt(0)")
    Z = [None] * 16
    for q in range(4):
        for j0 in range(4): Z[q + 4 * j0] = out[q][j0]
    k("s_mov_b32 s34, %s" % f2h(2.0 ** -22))
    for i in range(16):
        z = Z[i]
        k("v_mul_f32 v%d, s34, v%d" % (z, z))
        k("v_mul_f32 v%d, s34, v%d" % (z + 1, z + 1))
        k("v_cvt_pk_bf16_f32 v9, v%d, v%d" % (z, z + 1))
        k("v_lshlrev_b32 v%d, 16, v9" % z)
        k("v_and_b32 v%d, 0xffff0000, v9" % (z + 1))
        k("v_lshlrev_b32 v%d, 16, v%d" % (XR[2 * i], XR[2 * i]))
        k("v_lshlrev_b32 v%d, 16, v%d" % (XR[2 * i + 1], XR[2 * i + 1]))
        k("v_add_f32 v%d, v%d, v%d" % (z, z, XR[2 * i]))
        k("v_add_f32 v%d, v%d, v%d" % (z + 1, z + 1, XR[2 * i + 1]))
        k("v_cvt_pk_bf16_f32 v%d, v%d, v%d" % (XR[2 * i], z, z + 1))
        k("v_lshlrev_b32 v%d, 16, v%d" % (z, XR[2 * i]))
        k("v_and_b32 v%d, 0xffff0000, v%d" % (z + 1, XR[2 * i]))
        k("buffer_store_short v%d, v3, s[24:27], 0 offen offset:%d" % (XR[2 * i], i * 128))
        k("buffer_store_short_d16_hi v%d, v3, s[24:27], 0 offen offset:%d" % (XR[2 * i], 2048 + i * 128))
    xa = [z for z in Z]; xb = [z + 1 for z in Z]
    layernorm_regs(k, xa, 5, 6, 20, 21)
    layernorm_regs(k, xb, 7, 8, 22, 23)
    layernorm_finish(k, xa, 5, 6, 9, 20)
    layernorm_finish(k, xb, 7, 8, 10, 22)
    for i in range(16):
        k("buffer_store_short_d16_hi v%d, v3, s[28:31], 0 offen offset:%d" % (Z[i], i * 128))
        k("buffer_store_short_d16_hi v%d, v3, s[28:31], 0 offen offset:%d" % (Z[i] + 1, 2048 + i * 128))
    k("fc_end:")
    k("s_endpgm")
    k.L[cpos:cpos] = ["    " + l for l in cg.const_init()]
    return k, 4 * REG_PITCH

if __name__ == "__main__":
    ka, la = kernel_a(); kb, lb = kernel_b(); kc, lc = kernel_c()
    make_file([(ka, 256, 256, la), (kb, 513, 256, lb), (kc, 256, 256, lc)], "fft.s")
```

```python
from fftgen import *
from kfft import WS_H, WS_LN2, WS_ACT, WS_TAB

M_ = 2048

def gemm_kernel(name, K, N, BN, NB, mode, dbg=0, NWM=4, NWN=2):
    k = Kern(name)
    BM = 128; BK = 64
    NW = NWM * NWN
    NS = K // BK
    NI = BM // 16 // NWM; NJ = BN // 16 // NWN
    WCH = BN // 8
    XB = BM * 128
    nXd = 16 // NW
    nWblk = BK * WCH // 64
    nWd = (nWblk + NW - 1) // NW
    WB = nWd * NW * 1024
    STG = XB + WB
    pitchW = BN * 2
    v = 8
    acc = [[v + 4 * (i * NJ + j) for j in range(NJ)] for i in range(NI)]; v += 4 * NI * NJ
    WF = [[v + 4 * (s * NJ + j) for j in range(NJ)] for s in range(2)]; v += 8 * NJ
    XF = [[v + 4 * (s * NI + i) for i in range(NI)] for s in range(2)]; v += 8 * NI
    v = max(v, WF[0][0] + 4 * NJ + 16)
    vX = [[v + 2 * b + s for s in range(2)] for b in range(NB)]; v += 2 * NB
    vW = [[v + NJ * b + j for j in range(NJ)] for b in range(NB)]; v += NJ * NB
    vDX = [v + u for u in range(nXd)]; v += nXd
    vDW = [v + u for u in range(nWd)]; v += nWd
    vDum = v; vE = v + 1; v += 2
    if mode == 1:
        k("s_load_dwordx4 s[4:7], s[0:1], 32")
    else:
        k("s_load_dwordx4 s[4:7], s[0:1], 48")
    k("""
    s_load_dwordx2 s[16:17], s[0:1], 72
    s_cmp_ge_u32 s2, %d
    s_cbranch_scc1 %s_end
    s_waitcnt lgkmcnt(0)
    """ % (16 * (N // BN), name))
    srd(k, 8, 4, K * N * 2)
    srd(k, 12, 16, M_ * K * 2, WS_LN2 if mode == 1 else WS_ACT)
    if mode == 1:
        srd(k, 20, 6, N * 2)
        srd(k, 24, 16, M_ * N * 2, WS_ACT)
        srd(k, 52, 16, 131072, WS_TAB)
    else:
        srd(k, 20, 16, M_ * N * 2, WS_H)
        srd(k, 24, 6, M_ * N * 2)
    if mode == 1:
        k("""
        s_and_b32 s28, s2, 7
        s_lshr_b32 s29, s2, 3
        s_and_b32 s30, s28, 1
        s_lshl_b32 s30, s30, 3
        s_and_b32 s31, s29, 7
        s_add_u32 s30, s30, s31
        s_lshr_b32 s31, s28, 1
        s_lshl_b32 s31, s31, 2
        s_lshr_b32 s32, s29, 3
        s_add_u32 s31, s31, s32
        """)
    else:
        k("""
        s_and_b32 s28, s2, 7
        s_lshr_b32 s29, s2, 3
        s_and_b32 s30, s28, 3
        s_lshl_b32 s30, s30, 2
        s_and_b32 s31, s29, 3
        s_add_u32 s30, s30, s31
        s_lshr_b32 s31, s28, 2
        s_lshl_b32 s31, s31, %d
        s_lshr_b32 s32, s29, 2
        s_add_u32 s31, s31, s32
        """ % (3 if BN == 64 else 2))
    k("s_lshl_b32 s33, s30, 7")
    k("s_mul_i32 s34, s31, %d" % BN)
    k("""
    v_and_b32 v1, 63, v0
    v_lshrrev_b32 v2, 6, v0
    v_and_b32 v3, 15, v1
    v_lshrrev_b32 v4, 4, v1
    v_readfirstlane_b32 s35, v2
    """)
    k("""
    v_lshrrev_b32 v5, 3, v1
    v_and_b32 v6, 7, v1
    v_xor_b32 v6, v6, v5
    v_lshl_add_u32 v5, v2, %d, v5
    v_add_u32 v5, s33, v5
    s_mov_b32 s36, %d
    v_mul_lo_u32 v5, v5, s36
    v_lshl_add_u32 v5, v6, 4, v5
    """ % ({1: 3, 2: 4, 4: 5}[nXd], K * 2))
    for u in range(nXd):
        k("v_add_u32 v%d, %d, v5" % (vDX[u], u * 8 * K * 2 - u * 1024 + 4096))
    magic = (65536 + WCH - 1) // WCH
    for L in range(nWd * NW * 64): assert (L * magic) >> 16 == L // WCH
    k("s_lshl_b32 s37, s34, 1")
    k("s_mov_b32 s38, %d" % (N * 2))
    for u in range(nWd):
        k("v_mul_u32_u24 v5, %d, v2" % (nWd * 64))
        k("v_add_u32 v5, v5, v1")
        k("v_add_u32 v5, %d, v5" % (u * 64))
        k("v_mul_u32_u24 v6, %d, v5" % magic)
        k("v_lshrrev_b32 v6, 16, v6")
        k("v_mul_u32_u24 v7, %d, v6" % WCH)
        k("v_sub_u32 v%d, v5, v7" % vE)
        k("v_bfe_u32 v7, v6, 3, 1")
        if BN == 224:
            k("v_lshlrev_b32 v7, 1, v7")
        elif BN == 64:
            k("v_lshlrev_b32 v7, 2, v7")
            k("v_and_b32 v%d, 2, v6" % vDum)
            k("v_or_b32 v7, v7, v%d" % vDum)
        else:
            k("v_lshlrev_b32 v7, 3, v7")
            k("v_and_b32 v%d, 3, v6" % vDum)
            k("v_lshl_add_u32 v7, v%d, 1, v7" % vDum)
        k("v_xor_b32 v%d, v%d, v7" % (vE, vE))
        k("v_mul_lo_u32 v6, v6, s38")
        k("v_lshl_add_u32 v6, v%d, 4, v6" % vE)
        k("v_add_u32 v6, s37, v6")
        k("v_add_u32 v6, %d, v6" % (4096 - (u % 4) * 1024))
        if nWd * NW > nWblk:
            k("v_cmp_le_u32 vcc, %d, v5" % (nWblk * 64))
            k("v_mov_b32 v7, 0x7fffffff")
            k("v_cndmask_b32 v6, v6, v7, vcc")
        k("v_mov_b32 v%d, v6" % vDW[u])
    k("s_sub_u32 s8, s8, 4096")
    k("s_subb_u32 s9, s9, 0")
    k("s_add_u32 s10, s10, 4096")
    k("s_sub_u32 s12, s12, 4096")
    k("s_subb_u32 s13, s13, 0")
    k("s_add_u32 s14, s14, 4096")
    k("v_and_b32 v5, %d, v2" % (NWM - 1))
    k("v_mul_u32_u24 v5, %d, v5" % (NI * 16))
    k("v_add_u32 v5, v5, v3")
    k("v_lshlrev_b32 v5, 7, v5")
    k("v_and_b32 v6, 7, v1")
    for s in range(2):
        k("v_or_b32 v7, %d, v4" % (4 * s))
        k("v_xor_b32 v7, v7, v6")
        k("v_lshl_add_u32 v7, v7, 4, v5")
        for b in range(NB):
            k("v_add_u32 v%d, %d, v7" % (vX[b][s], b * STG))
    k("v_lshrrev_b32 v5, 2, v3")
    k("v_lshl_add_u32 v6, v4, 3, v5")
    k("v_mul_u32_u24 v6, %d, v6" % pitchW)
    k("v_and_b32 v7, 3, v1")
    k("v_lshl_add_u32 v6, v7, 3, v6")
    k("v_and_b32 v7, 1, v4")
    if BN == 224:
        k("v_lshlrev_b32 v7, 1, v7")
    elif BN == 64:
        k("v_lshlrev_b32 v7, 2, v7")
        k("v_and_b32 v5, 2, v5")
        k("v_or_b32 v7, v7, v5")
    else:
        k("v_lshlrev_b32 v7, 3, v7")
        k("v_lshl_add_u32 v7, v5, 1, v7")
    k("v_lshrrev_b32 v5, %d, v2" % {1: 0, 2: 1, 4: 2}[NWM])
    k("v_mul_u32_u24 v5, %d, v5" % (NJ * 2))
    for j in range(NJ):
        k("v_add_u32 v%d, %d, v5" % (vE, 2 * j))
        k("v_xor_b32 v%d, v%d, v7" % (vE, vE))
        k("v_lshl_add_u32 v%d, v%d, 4, v6" % (vE, vE))
        for b in range(NB):
            k("v_add_u32 v%d, %d, v%d" % (vW[b][j], b * STG + XB, vE))
    k("s_mul_i32 s40, s35, %d" % (nXd * 1024))
    k("s_mul_i32 s41, s35, %d" % (nWd * 1024))
    k("s_add_u32 s41, s41, %d" % XB)
    k("s_lshl_b32 s56, s35, 10")
    k("s_mov_b32 s57, 0")
    vm = []
    def vwait(tag, extra=""):
        idx = max(i for i, t in enumerate(vm) if t == tag)
        n = len(vm) - 1 - idx
        assert n <= 63
        k("s_waitcnt vmcnt(%d)%s" % (n, extra))
    def dma(st):
        b = st % NB
        if dbg & 2 and st >= NB:
            vm.append(st); k("buffer_load_dword v%d, v%d, s[12:15], 0 offen" % (vDum, vDX[0])); return
        k("s_add_u32 m0, s40, %d" % (b * STG))
        k("s_lshl_b32 s42, s57, 7")
        k("s_mul_i32 s43, s57, %d" % (BK * N * 2))
        for u in range(nXd):
            k("buffer_load_dwordx4 v%d, s[12:15], s42 offen offset:%d lds" % (vDX[u], u * 1024)); vm.append(st)
        k("s_add_u32 s57, s57, 1")
        k("s_cmp_eq_u32 s57, %d" % NS)
        k("s_cselect_b32 s57, 0, s57")
        for u in range(nWd):
            if u % 4 == 0: k("s_add_u32 m0, s41, %d" % (b * STG + u * 1024))
            k("buffer_load_dwordx4 v%d, s[8:11], s43 offen offset:%d lds" % (vDW[u], (u % 4) * 1024)); vm.append(st)
    def reads(st, ks):
        b = st % NB
        for i in range(NI):
            k("ds_read_b128 v[%d:%d], v%d offset:%d" % (XF[ks][i], XF[ks][i] + 3, vX[b][ks], i * 2048))
        for j in range(NJ):
            for half in range(2):
                k("ds_read_b64_tr_b16 v[%d:%d], v%d offset:%d" % (WF[ks][j] + 2 * half, WF[ks][j] + 2 * half + 1, vW[b][j],
                                                                   (ks * 32 + half * 4) * pitchW))
    def mfmas(ks, first):
        if dbg & 4 and not first: return
        for j in range(NJ):
            for i in range(NI):
                a = acc[i][j]
                c = "0" if first else "v[%d:%d]" % (a, a + 3)
                k("v_mfma_f32_16x16x32_bf16 v[%d:%d], v[%d:%d], v[%d:%d], %s" % (a, a + 3, WF[ks][j], WF[ks][j] + 3,
                                                                                 XF[ks][i], XF[ks][i] + 3, c))
    def tabload(b):
        lo = b * STG; hi = min((b + 1) * STG, 131072)
        n = (hi - lo) // 1024
        assert n % NW == 0
        for u in range(n // NW):
            k("s_add_u32 m0, s56, %d" % (lo + u * NW * 1024))
            k("s_mov_b32 s42, m0")
            k("buffer_load_dwordx4 v%d, s[52:55], s42 offen lds" % vDum); vm.append("tab")
    def capture(fn, *a):
        save = k.L; k.L = []
        fn(*a)
        out = k.L; k.L = save
        return out
    def groups(lines):
        gs = []; cur = []
        for l in lines:
            cur.append(l)
            op = l.split()[0]
            if op.startswith("buffer_") or op.startswith("ds_") or op.startswith("v_"):
                gs.append(cur); cur = []
        if cur: gs.append(cur)
        return gs
    def interleave(mf, others):
        gs = groups(others)
        m = len(gs); gi = 0
        for idx, l in enumerate(mf):
            k.L.append(l)
            for _ in range(2):
                if gi < m:
                    k.L.extend(gs[gi]); gi += 1
        while gi < m:
            k.L.extend(gs[gi]); gi += 1
    for st in range(min(NB, NS)): dma(st)
    vwait(0)
    k("s_barrier")
    reads(0, 0)
    for st in range(NS):
        k("s_waitcnt lgkmcnt(0)")
        interleave(capture(mfmas, 0, st == 0), capture(reads, st, 1))
        if st + 1 < NS:
            vwait(st + 1, " lgkmcnt(0)")
            k("s_barrier")
            oth = capture(reads, st + 1, 0)
            if st + NB < NS:
                oth += capture(dma, st + NB)
            elif mode == 1:
                if st + NB == NS: k("v_lshlrev_b32 v%d, 4, v1" % vDum)
                oth += capture(tabload, st % NB)
            interleave(capture(mfmas, 1, False), oth)
        else:
            k("s_waitcnt lgkmcnt(0)")
            mfmas(1, False)
    if mode == 1:
        k("s_barrier")
        tabload((NS - 1) % NB)
    k("v_and_b32 v5, %d, v2" % (NWM - 1))
    k("v_mul_u32_u24 v5, %d, v5" % (NI * 16))
    k("v_add_u32 v5, v5, v3")
    k("v_add_u32 v5, s33, v5")
    k("s_mov_b32 s36, %d" % (N * 2))
    k("v_mul_lo_u32 v5, v5, s36")
    k("v_lshrrev_b32 v6, %d, v2" % {1: 0, 2: 1, 4: 2}[NWM])
    k("v_mul_u32_u24 v6, %d, v6" % (NJ * 16))
    k("v_lshl_add_u32 v6, v4, 2, v6")
    k("v_add_u32 v6, s34, v6")
    k("v_lshlrev_b32 v6, 1, v6")
    k("v_add_u32 v5, v5, v6")
    e = WF[0][0]
    if mode == 1:
        B = [e + 4 * j for j in range(NJ)]; e += 4 * NJ
        for j in range(NJ):
            k("buffer_load_dwordx2 v[%d:%d], v6, s[20:23], 0 offen offset:%d" % (B[j], B[j] + 1, j * 32))
        k("s_waitcnt vmcnt(0)")
        k("s_barrier")
        for j in range(NJ):
            k("v_and_b32 v%d, 0xffff0000, v%d" % (B[j] + 3, B[j] + 1))
            k("v_lshlrev_b32 v%d, 16, v%d" % (B[j] + 2, B[j] + 1))
            k("v_and_b32 v%d, 0xffff0000, v%d" % (B[j] + 1, B[j]))
            k("v_lshlrev_b32 v%d, 16, v%d" % (B[j], B[j]))
        T = e; e += 4
        pend = []
        for i in range(NI):
            for j in range(NJ):
                a0 = acc[i][j]
                for p in range(2):
                    a, b = a0 + 2 * p, a0 + 2 * p + 1
                    t = T + p
                    k("v_cvt_pk_bf16_f32 v%d, v%d, v%d" % (t, a, b))
                    k("v_lshlrev_b32 v%d, 16, v%d" % (a, t))
                    k("v_and_b32 v%d, 0xffff0000, v%d" % (b, t))
                    k("v_pk_add_f32 v[%d:%d], v[%d:%d], v[%d:%d]" % (a, b, a, b, B[j] + 2 * p, B[j] + 2 * p + 1))
                    k("v_cvt_pk_bf16_f32 v%d, v%d, v%d" % (t, a, b))
                    k("v_lshlrev_b32 v%d, 1, v%d" % (a, t))
                    k("v_and_b32 v%d, 0x1fffe, v%d" % (a, a))
                    k("v_lshrrev_b32 v%d, 15, v%d" % (b, t))
                    k("v_and_b32 v%d, 0x1fffe, v%d" % (b, b))
                for p in range(2):
                    a, b = a0 + 2 * p, a0 + 2 * p + 1
                    k("ds_read_u16 v%d, v%d" % (a, a))
                    k("ds_read_u16_d16_hi v%d, v%d" % (b, b))
                pend.append((i, j))
                if len(pend) == 3 or (i == NI - 1 and j == NJ - 1):
                    k("s_waitcnt lgkmcnt(0)")
                    for (ii, jj) in pend:
                        aa = acc[ii][jj]
                        k("v_or_b32 v%d, v%d, v%d" % (aa, aa, aa + 1))
                        k("v_or_b32 v%d, v%d, v%d" % (aa + 1, aa + 2, aa + 3))
                        k("s_mov_b32 s43, %d" % (ii * 16 * N * 2))
                        k("buffer_store_dwordx2 v[%d:%d], v5, s[24:27], s43 offen offset:%d" % (aa, aa + 1, jj * 32))
                    pend = []
    else:
        H = [[e + 2 * (i * NJ + j) for j in range(NJ)] for i in range(NI)]; e += 2 * NI * NJ
        for i in range(NI):
            k("s_mov_b32 s43, %d" % (i * 16 * N * 2))
            for j in range(NJ):
                k("buffer_load_dwordx2 v[%d:%d], v5, s[20:23], s43 offen offset:%d" % (H[i][j], H[i][j] + 1, j * 32))
        k("s_waitcnt vmcnt(0)")
        T = e; e += 4
        for i in range(NI):
            for j in range(NJ):
                a0 = acc[i][j]; h = H[i][j]
                for p in range(2):
                    a, b = a0 + 2 * p, a0 + 2 * p + 1
                    k("v_cvt_pk_bf16_f32 v%d, v%d, v%d" % (T, a, b))
                    k("v_lshlrev_b32 v%d, 16, v%d" % (a, T))
                    k("v_and_b32 v%d, 0xffff0000, v%d" % (b, T))
                    k("v_lshlrev_b32 v%d, 16, v%d" % (T + 1, h + p))
                    k("v_and_b32 v%d, 0xffff0000, v%d" % (T + 2, h + p))
                    k("v_add_f32 v%d, v%d, v%d" % (a, a, T + 1))
                    k("v_add_f32 v%d, v%d, v%d" % (b, b, T + 2))
                    k("v_cvt_pk_bf16_f32 v%d, v%d, v%d" % (a0 + p, a, b))
                k("s_mov_b32 s43, %d" % (i * 16 * N * 2))
                k("buffer_store_dwordx2 v[%d:%d], v5, s[24:27], s43 offen offset:%d" % (a0, a0 + 1, j * 32))
    k("%s_end:" % name)
    k("s_endpgm")
    return k, NB * STG, NW * 64

if __name__ == "__main__":
    import kfft, sys
    outf = sys.argv[1] if len(sys.argv) > 1 else "full.s"
    dbg = int(sys.argv[2]) if len(sys.argv) > 2 else 0
    ka, la = kfft.kernel_a(); kb, lb = kfft.kernel_b(); kc, lc = kfft.kernel_c()
    g1, l1, t1 = gemm_kernel("gemm1_kernel", 1024, 3584, 224, 3, 1, dbg)
    g2, l2, t2 = gemm_kernel("gemm2_kernel", 3584, 1024, 64, 6, 2, dbg)
    make_file([(ka, 512, 256, la), (kb, 513, 256, lb), (kc, 256, 256, lc), (g1, 256, t1, l1), (g2, 256, t2, l2)], outf)
```

```python
from fftgen import *

WS_X1T = 0
X1T_BYTES = 513 * 2048 * 8
WS_H = 16 << 20
WS_LN2 = 24 << 20
WS_ACT = 32 << 20
WS_WT = 48 << 20
WS_TAB = 60 << 20
WS_Y = 64 << 20
REG_PITCH = 8704 + 64

def padA(k, dst, idx):
    k("v_lshrrev_b32 v%d, 6, v%d" % (dst, idx))
    k("v_lshl_add_u32 v%d, v%d, 2, v%d" % (dst, dst, idx))
    k("v_lshlrev_b32 v%d, 3, v%d" % (dst, dst))

def padoffA(i): return (i + 4 * (i >> 6)) * 8

def row_fft_passes(k, cg, X, inv, vlane, vbase, vt):
    pool = cg.pool
    vf, va, tmp, vr = vt
    Y = cg.dft(X, inv)
    k("v_cvt_f32_u32 v%d, v%d" % (vf, vlane))
    Y = cg.twiddle(Y, vf, 1024, inv, tmp)
    k("v_lshl_add_u32 v%d, v%d, 3, v%d" % (va, vlane, vbase))
    for k1 in range(16):
        k("ds_write_b64 v%d, %s offset:%d" % (va, P(Y[k1]), k1 * 68 * 8))
        pool.put(Y[k1])
    k("v_lshrrev_b32 v%d, 2, v%d" % (va, vlane))
    k("v_mul_u32_u24 v%d, 68, v%d" % (va, va))
    k("v_and_b32 v%d, 3, v%d" % (vr, vlane))
    k("v_add_u32 v%d, v%d, v%d" % (va, va, vr))
    k("v_lshl_add_u32 v%d, v%d, 3, v%d" % (va, va, vbase))
    X = []
    for m in range(16):
        r = pool.get(); X.append(r)
        k("ds_read_b64 %s, v%d offset:%d" % (P(r), va, m * 32))
    k("s_waitcnt lgkmcnt(0)")
    Y = cg.dft(X, inv)
    k("v_cvt_f32_u32 v%d, v%d" % (vf, vr))
    Y = cg.twiddle(Y, vf, 64, inv, tmp)
    for j1 in range(16):
        k("ds_write_b64 v%d, %s offset:%d" % (va, P(Y[j1]), j1 * 32))
        pool.put(Y[j1])
    k("v_and_b32 v%d, 15, v%d" % (va, vlane))
    k("v_mul_u32_u24 v%d, 68, v%d" % (va, va))
    k("v_lshrrev_b32 v%d, 4, v%d" % (vr, vlane))
    k("v_lshl_add_u32 v%d, v%d, 2, v%d" % (va, vr, va))
    k("v_lshl_add_u32 v%d, v%d, 3, v%d" % (va, va, vbase))
    XX = []
    for q in range(4):
        rs = []
        for e in range(4):
            r = pool.get(); rs.append(r)
            k("ds_read_b64 %s, v%d offset:%d" % (P(r), va, q * 128 + e * 8))
        XX.append(rs)
    k("s_waitcnt lgkmcnt(0)")
    out = []
    for q in range(4):
        out.append(cg.dft(XX[q], inv))
    return out

def mish_scalar(k, a, T):
    t, e1, u1, w1, x1 = T, T + 1, T + 2, T + 3, T + 4
    k("s_mov_b32 s52, %s" % f2h(-1.4426950408889634))
    k("s_mov_b32 s53, %s" % f2h(0.6931471805599453))
    k("s_mov_b32 s54, %s" % f2h(2.0 ** -10))
    k("s_mov_b32 s55, %s" % f2h(-2 * 1.4426950408889634))
    k("s_mov_b32 s56, %s" % f2h(0.125))
    k("s_mov_b32 s57, %s" % f2h(2.0 / 15))
    k("s_mov_b32 s58, %s" % f2h(-1.0 / 3))
    k("v_mul_f32 v%d, s52, abs(v%d)" % (e1, a))
    k("v_exp_f32 v%d, v%d" % (e1, e1))
    bf16_round(k, e1)
    k("v_add_f32 v%d, 1.0, v%d" % (u1, e1))
    k("v_log_f32 v%d, v%d" % (u1, u1))
    k("v_fma_f32 v%d, v%d, -0.5, 1.0" % (w1, e1))
    k("v_mul_f32 v%d, s53, v%d" % (u1, u1))
    k("v_mul_f32 v%d, v%d, v%d" % (w1, w1, e1))
    k("v_cmp_gt_f32 vcc, s54, v%d" % e1)
    k("v_cndmask_b32 v%d, v%d, v%d, vcc" % (u1, u1, w1))
    bf16_round(k, u1)
    k("v_max_f32 v%d, 0, v%d" % (w1, a))
    k("v_cmp_u_f32 vcc, v%d, v%d" % (a, a))
    k("v_cndmask_b32 v%d, v%d, v%d, vcc" % (w1, w1, a))
    k("v_add_f32 v%d, v%d, v%d" % (u1, u1, w1))
    bf16_round(k, u1)
    k("v_mul_f32 v%d, s55, v%d" % (e1, u1))
    k("v_exp_f32 v%d, v%d" % (e1, e1))
    k("v_mul_f32 v%d, v%d, v%d" % (x1, u1, u1))
    k("v_add_f32 v%d, 1.0, v%d" % (w1, e1))
    k("v_rcp_f32 v%d, v%d" % (w1, w1))
    k("v_sub_f32 v%d, 1.0, v%d" % (e1, e1))
    k("v_mul_f32 v%d, v%d, v%d" % (e1, e1, w1))
    k("v_mov_b32 v%d, s58" % t)
    k("v_fma_f32 v%d, v%d, s57, v%d" % (w1, x1, t))
    k("v_fma_f32 v%d, v%d, v%d, 1.0" % (w1, w1, x1))
    k("v_mul_f32 v%d, v%d, v%d" % (w1, w1, u1))
    k("v_cmp_gt_f32 vcc, s56, v%d" % u1)
    k("v_cndmask_b32 v%d, v%d, v%d, vcc" % (e1, e1, w1))
    bf16_round(k, e1)
    k("v_mul_f32 v%d, v%d, v%d" % (a, a, e1))
    bf16_round(k, a)

def kernel_a():
    k = Kern("fft_a_kernel")
    pool = Pool(16, 112)
    cg = CG(k, pool, 40)
    k("""
    s_load_dwordx2 s[4:5], s[0:1], 0
    s_load_dwordx2 s[6:7], s[0:1], 72
    s_load_dwordx4 s[64:67], s[0:1], 8
    s_cmp_ge_u32 s2, 512
    s_cbranch_scc1 fa_end
    s_waitcnt lgkmcnt(0)
    """)
    srd(k, 8, 4, 2048 * 1024 * 2)
    srd(k, 12, 6, X1T_BYTES)
    srd(k, 24, 64, 2048 * 513 * 2)
    srd(k, 28, 66, 2048 * 513 * 2)
    srd(k, 32, 6, X1T_BYTES, WS_WT)
    srd(k, 36, 6, 131072, WS_TAB)
    k("s_cmp_ge_u32 s2, 256")
    k("s_cbranch_scc1 fa_aux")
    cpos = len(k.L)
    k("""
    v_and_b32 v1, 63, v0
    v_lshrrev_b32 v2, 6, v0
    s_lshl_b32 s16, s2, 3
    v_lshl_add_u32 v3, v2, 1, s16
    v_lshlrev_b32 v3, 11, v3
    v_lshl_add_u32 v3, v1, 1, v3
    """)
    X = [pool.get() for _ in range(16)]
    for j in range(16):
        k("buffer_load_ushort v%d, v3, s[8:11], 0 offen offset:%d" % (X[j], j * 128))
        k("buffer_load_ushort v%d, v3, s[8:11], 0 offen offset:%d" % (X[j] + 1, 2048 + j * 128))
    k("s_waitcnt vmcnt(0)")
    k("v_mul_u32_u24 v4, %d, v2" % REG_PITCH)
    for j in range(16):
        k("v_lshlrev_b32 v%d, 16, v%d" % (X[j], X[j]))
        k("v_lshlrev_b32 v%d, 16, v%d" % (X[j] + 1, X[j] + 1))
    xa = [r for r in X]; xb = [r + 1 for r in X]
    layernorm_regs(k, xa, 5, 6, 20, 21)
    layernorm_regs(k, xb, 7, 8, 22, 23)
    layernorm_finish(k, xa, 5, 6, 9, 20)
    layernorm_finish(k, xb, 7, 8, 10, 22)
    out = row_fft_passes(k, cg, X, False, 1, 4, (5, 6, 7, 8))
    k("v_lshl_add_u32 v6, v1, 3, v4")
    for q in range(4):
        for j0 in range(4):
            k("ds_write_b64 v6, %s offset:%d" % (P(out[q][j0]), 68 * 8 * (q + 4 * j0)))
            pool.put(out[q][j0])
    k("s_waitcnt lgkmcnt(0)")
    k("s_barrier")
    k("""
    v_and_b32 v5, 3, v0
    v_mul_u32_u24 v6, %d, v5
    v_lshrrev_b32 v7, 2, v0
    v_lshl_add_u32 v8, v5, 1, s16
    v_lshlrev_b32 v8, 3, v8
    """ % REG_PITCH)
    regs = []
    for it in range(9):
        a = pool.get(); b = pool.get()
        regs.append((a, b))
        k("v_add_u32 v9, %d, v7" % (64 * it))
        padA(k, 10, 9)
        k("v_add_u32 v10, v10, v6")
        k("ds_read_b64 %s, v10" % P(a))
        k("v_sub_u32 v11, 1024, v9")
        k("v_and_b32 v11, 1023, v11")
        padA(k, 12, 11)
        k("v_add_u32 v12, v12, v6")
        k("ds_read_b64 %s, v12" % P(b))
    k("s_waitcnt lgkmcnt(0)")
    for it in range(9):
        a, b = regs[it]
        o = 112 + 4 * (it % 2)
        k("v_add_f32 v%d, v%d, v%d" % (o, a, b))
        k("v_sub_f32 v%d, v%d, v%d" % (o + 1, a + 1, b + 1))
        k("v_add_f32 v%d, v%d, v%d" % (o + 2, a + 1, b + 1))
        k("v_sub_f32 v%d, v%d, v%d" % (o + 3, b, a))
        k("v_add_u32 v9, %d, v7" % (64 * it))
        k("v_lshl_add_u32 v9, v9, 14, v8")
        k("buffer_store_dwordx4 v[%d:%d], v9, s[12:15], 0 offen" % (o, o + 3))
    k("s_branch fa_end")
    k("fa_aux:")
    k("s_sub_u32 s2, s2, 256")
    k("s_lshl_b32 s16, s2, 3")
    k("""
    v_and_b32 v5, 3, v0
    v_lshrrev_b32 v7, 2, v0
    v_lshl_add_u32 v8, v5, 1, s16
    v_mul_u32_u24 v9, 1026, v8
    v_lshl_add_u32 v9, v7, 1, v9
    v_lshlrev_b32 v8, 3, v8
    """)
    WQ = []
    for it in range(9):
        a = pool.get(); b = pool.get(); assert b == a + 2 and a % 4 == 0
        WQ.append(a)
        k("buffer_load_ushort v%d, v9, s[24:27], 0 offen offset:%d" % (a, it * 128))
        k("buffer_load_ushort v%d, v9, s[28:31], 0 offen offset:%d" % (a + 1, it * 128))
        k("buffer_load_ushort v%d, v9, s[24:27], 0 offen offset:%d" % (a + 2, it * 128 + 1026))
        k("buffer_load_ushort v%d, v9, s[28:31], 0 offen offset:%d" % (a + 3, it * 128 + 1026))
    k("s_lshl_b32 s17, s2, 8")
    k("v_add_u32 v10, s17, v0")
    k("v_lshlrev_b32 v112, 16, v10")
    mish_scalar(k, 112, 113)
    k("v_lshlrev_b32 v10, 1, v10")
    k("buffer_store_short_d16_hi v112, v10, s[36:39], 0 offen")
    k("s_waitcnt vmcnt(1)")
    for it in range(9):
        a = WQ[it]
        for q in range(4): k("v_lshlrev_b32 v%d, 16, v%d" % (a + q, a + q))
        k("v_add_u32 v10, %d, v7" % (64 * it))
        k("v_lshl_add_u32 v10, v10, 14, v8")
        k("buffer_store_dwordx4 v[%d:%d], v10, s[32:35], 0 offen" % (a, a + 3))
        pool.put(a); pool.put(a + 2)
    k("fa_end:")
    k("s_endpgm")
    k.L[cpos:cpos] = ["    " + l for l in cg.const_init()]
    return k, 4 * REG_PITCH

def kernel_b():
    k = Kern("fft_b_kernel")
    pool = Pool(24, 120)
    cg = CG(k, pool, 40)
    k("""
    s_load_dwordx2 s[64:65], s[0:1], 32
    s_load_dwordx2 s[66:67], s[0:1], 48
    s_load_dwordx2 s[16:17], s[0:1], 72
    s_cmp_ge_u32 s2, 513
    s_cbranch_scc1 fb_end
    s_waitcnt lgkmcnt(0)
    """)
    srd(k, 8, 16, X1T_BYTES, WS_WT)
    srd(k, 20, 16, X1T_BYTES)
    srd(k, 12, 16, X1T_BYTES, WS_Y)
    srd(k, 32, 66, 3584 * 1024 * 2)
    srd(k, 28, 64, 3584 * 1024 * 2)
    cpos = len(k.L)
    k("s_lshl_b32 s24, s2, 14")
    k("v_lshlrev_b32 v1, 3, v0")
    X = [pool.get() for _ in range(8)]
    for j in range(8):
        k("s_add_u32 s25, s24, %d" % (j * 2048))
        k("buffer_load_dwordx2 %s, v1, s[20:23], s25 offen" % P(X[j]))
    k("""
    v_lshrrev_b32 v2, 6, v0
    v_bfe_u32 v3, v0, 3, 3
    v_lshl_add_u32 v2, v3, 3, v2
    v_and_b32 v3, 7, v0
    v_lshl_add_u32 v2, v3, 6, v2
    v_lshlrev_b32 v2, 3, v2
    """)
    W = [[pool.get() for _ in range(4)] for _ in range(2)]
    for h in range(2):
        for k4 in range(4):
            k("s_add_u32 s25, s24, %d" % ((4 * h + 512 * k4) * 8))
            k("buffer_load_dwordx2 %s, v2, s[8:11], s25 offen" % P(W[h][k4]))
    k("s_lshl_b32 s36, s2, 8")
    k("v_add_u32 v3, s36, v0")
    k("v_lshlrev_b32 v3, 7, v3")
    k("buffer_load_dword v8, v3, s[28:31], 0 offen")
    k("v_subrev_u32 v3, %d, v3" % (57344 * 128))
    k("buffer_load_dword v9, v3, s[32:35], 0 offen")
    vf, va, tmp, vr = 4, 5, 6, 7
    def addr_pass(ps):
        if ps == 1:
            k("v_lshrrev_b32 v%d, 5, v0" % va)
            k("v_lshl_add_u32 v%d, v%d, 2, v0" % (va, va))
            k("v_lshlrev_b32 v%d, 3, v%d" % (va, va))
            k("v_cvt_f32_u32 v%d, v0" % vf)
            return [j * 288 * 8 for j in range(8)]
        if ps == 2:
            k("v_lshrrev_b32 v%d, 5, v0" % va)
            k("v_mul_u32_u24 v%d, 288, v%d" % (va, va))
            k("v_and_b32 v%d, 31, v0" % vr)
            k("v_add_u32 v%d, v%d, v%d" % (va, va, vr))
            k("v_lshlrev_b32 v%d, 3, v%d" % (va, va))
            k("v_cvt_f32_u32 v%d, v%d" % (vf, vr))
            return [j * 36 * 8 for j in range(8)]
        if ps == 3:
            k("v_lshrrev_b32 v%d, 2, v0" % va)
            k("v_mul_u32_u24 v%d, 36, v%d" % (va, va))
            k("v_and_b32 v%d, 3, v0" % vr)
            k("v_add_u32 v%d, v%d, v%d" % (va, va, vr))
            k("v_lshlrev_b32 v%d, 3, v%d" % (va, va))
            k("v_cvt_f32_u32 v%d, v%d" % (vf, vr))
            return [j * 4 * 8 for j in range(8)]
        if ps == 4:
            k("v_lshrrev_b32 v%d, 3, v0" % va)
            k("v_add_u32 v%d, v%d, v0" % (va, va))
            k("v_lshlrev_b32 v%d, 5, v%d" % (va, va))
            return [(h * 1152 + e) * 8 for h in range(2) for e in range(4)]
    def wr(Y, offs):
        for j in range(8):
            k("ds_write_b64 v%d, %s offset:%d" % (va, P(Y[j]), offs[j])); pool.put(Y[j])
        k("s_waitcnt lgkmcnt(0)")
        k("s_barrier")
    def rd(offs):
        X = []
        for j in range(8):
            r = pool.get(); X.append(r)
            k("ds_read_b64 %s, v%d offset:%d" % (P(r), va, offs[j]))
        k("s_waitcnt lgkmcnt(0)")
        return X
    offs = addr_pass(1)
    k("s_waitcnt vmcnt(10)")
    Y = cg.dft(X, False); Y = cg.twiddle(Y, vf, 2048, False, tmp); wr(Y, offs)
    for ps, M in ((2, 256), (3, 32)):
        offs = addr_pass(ps)
        X = rd(offs); Y = cg.dft(X, False); Y = cg.twiddle(Y, vf, M, False, tmp); wr(Y, offs)
    offs = addr_pass(4)
    X = rd(offs)
    k("s_waitcnt vmcnt(0)")
    Y = []
    for h in range(2):
        o = cg.dft(X[4 * h:4 * h + 4], False)
        for k4 in range(4):
            w = W[h][k4]
            o[k4] = cg.mulv(o[k4], w); pool.put(w)
        Y += cg.dft(o, True)
    wr(Y, offs)
    for ps, M in ((3, 32), (2, 256)):
        offs = addr_pass(ps)
        X = rd(offs); X = cg.twiddle(X, vf, M, True, tmp); Y = cg.dft(X, True); wr(Y, offs)
    offs = addr_pass(1)
    X = rd(offs); X = cg.twiddle(X, vf, 2048, True, tmp); Y = cg.dft(X, True)
    k("v_lshrrev_b32 v2, 3, v0")
    k("s_mov_b32 s26, %d" % (513 * 64))
    k("v_mul_lo_u32 v2, v2, s26")
    k("v_and_b32 v3, 7, v0")
    k("v_lshl_add_u32 v2, v3, 3, v2")
    k("s_lshl_b32 s27, s2, 6")
    for j in range(8):
        k("s_add_u32 s25, s27, %d" % (j * 32 * 513 * 64))
        k("buffer_store_dwordx2 %s, v2, s[12:15], s25 offen" % P(Y[j]))
    k("fb_end:")
    k("s_endpgm")
    k.L[cpos:cpos] = ["    " + l for l in cg.const_init()]
    return k, 2304 * 8

def kernel_c():
    k = Kern("fft_c_kernel")
    pool = Pool(16, 112)
    cg = CG(k, pool, 40)
    k("""
    s_load_dwordx2 s[4:5], s[0:1], 0
    s_load_dwordx2 s[6:7], s[0:1], 72
    s_cmp_ge_u32 s2, 256
    s_cbranch_scc1 fc_end
    s_waitcnt lgkmcnt(0)
    """)
    srd(k, 8, 4, 2048 * 1024 * 2)
    srd(k, 12, 6, X1T_BYTES, WS_Y)
    srd(k, 24, 6, 2048 * 1024 * 2, WS_H)
    srd(k, 28, 6, 2048 * 1024 * 2, WS_LN2)
    cpos = len(k.L)
    k("""
    s_lshl_b32 s16, s2, 3
    v_and_b32 v1, 63, v0
    v_lshrrev_b32 v2, 6, v0
    v_and_b32 v5, 3, v0
    v_mul_u32_u24 v6, %d, v5
    v_lshrrev_b32 v7, 2, v0
    v_lshlrev_b32 v13, 4, v0
    s_mul_i32 s17, s2, %d
    """ % (REG_PITCH, 513 * 64))
    for it in range(1, 9): k("s_add_u32 s%d, s17, %d" % (52 + it, it * 4096))
    regs = []
    for it in range(9):
        a = pool.get(); b = pool.get(); assert b == a + 2 and a % 4 == 0
        regs.append(a)
        k("buffer_load_dwordx4 v[%d:%d], v13, s[12:15], s17 offen offset:%d" % (a, a + 3, (it % 1) * 0)) if it == 0 else k("buffer_load_dwordx4 v[%d:%d], v13, s[12:15], s%d offen" % (a, a + 3, 52 + it))
    k("""
    v_lshl_add_u32 v3, v2, 1, s16
    v_lshlrev_b32 v3, 11, v3
    v_lshl_add_u32 v3, v1, 1, v3
    v_mul_u32_u24 v4, %d, v2
    """ % REG_PITCH)
    XR = list(range(120, 152))
    for i in range(16):
        k("buffer_load_ushort v%d, v3, s[8:11], 0 offen offset:%d" % (XR[2 * i], i * 128))
        k("buffer_load_ushort v%d, v3, s[8:11], 0 offen offset:%d" % (XR[2 * i + 1], 2048 + i * 128))
    k("s_waitcnt vmcnt(32)")
    for it in range(9):
        a = regs[it]
        k("v_add_u32 v9, %d, v7" % (64 * it))
        if it in (0, 8):
            k("v_and_b32 v10, 511, v9")
            k("v_cmp_eq_u32 vcc, 0, v10")
            k("v_cndmask_b32 v%d, v%d, 0, vcc" % (a + 1, a + 1))
            k("v_cndmask_b32 v%d, v%d, 0, vcc" % (a + 3, a + 3))
        k("v_sub_f32 v112, v%d, v%d" % (a, a + 3))
        k("v_add_f32 v113, v%d, v%d" % (a + 1, a + 2))
        k("v_add_f32 v114, v%d, v%d" % (a, a + 3))
        k("v_sub_f32 v115, v%d, v%d" % (a + 2, a + 1))
        padA(k, 10, 9)
        k("v_add_u32 v10, v10, v6")
        k("v_sub_u32 v11, 1024, v9")
        k("v_and_b32 v11, 1023, v11")
        padA(k, 12, 11)
        k("v_add_u32 v12, v12, v6")
        if it == 8:
            k("v_cmp_ge_u32 vcc, 512, v9")
            k("s_and_saveexec_b64 s[32:33], vcc")
        k("ds_write_b64 v10, v[112:113]")
        k("ds_write_b64 v12, v[114:115]")
        if it == 8:
            k("s_mov_b64 exec, s[32:33]")
        pool.put(a); pool.put(a + 2)
    k("s_waitcnt lgkmcnt(0)")
    k("s_barrier")
    k("v_lshl_add_u32 v6, v1, 3, v4")
    X = []
    for j in range(16):
        r = pool.get(); X.append(r)
        k("ds_read_b64 %s, v6 offset:%d" % (P(r), j * 68 * 8))
    k("s_waitcnt lgkmcnt(0)")
    out = row_fft_passes(k, cg, X, True, 1, 4, (5, 6, 7, 8))
    k("s_waitcnt vmcnt(0)")
    Z = [None] * 16
    for q in range(4):
        for j0 in range(4): Z[q + 4 * j0] = out[q][j0]
    k("s_mov_b32 s34, %s" % f2h(2.0 ** -22))
    for i in range(16):
        z = Z[i]
        k("v_mul_f32 v%d, s34, v%d" % (z, z))
        k("v_mul_f32 v%d, s34, v%d" % (z + 1, z + 1))
        k("v_cvt_pk_bf16_f32 v9, v%d, v%d" % (z, z + 1))
        k("v_lshlrev_b32 v%d, 16, v9" % z)
        k("v_and_b32 v%d, 0xffff0000, v9" % (z + 1))
        k("v_lshlrev_b32 v%d, 16, v%d" % (XR[2 * i], XR[2 * i]))
        k("v_lshlrev_b32 v%d, 16, v%d" % (XR[2 * i + 1], XR[2 * i + 1]))
        k("v_add_f32 v%d, v%d, v%d" % (z, z, XR[2 * i]))
        k("v_add_f32 v%d, v%d, v%d" % (z + 1, z + 1, XR[2 * i + 1]))
        k("v_cvt_pk_bf16_f32 v%d, v%d, v%d" % (XR[2 * i], z, z + 1))
        k("v_lshlrev_b32 v%d, 16, v%d" % (z, XR[2 * i]))
        k("v_and_b32 v%d, 0xffff0000, v%d" % (z + 1, XR[2 * i]))
        k("buffer_store_short v%d, v3, s[24:27], 0 offen offset:%d" % (XR[2 * i], i * 128))
        k("buffer_store_short_d16_hi v%d, v3, s[24:27], 0 offen offset:%d" % (XR[2 * i], 2048 + i * 128))
    xa = [z for z in Z]; xb = [z + 1 for z in Z]
    layernorm_regs(k, xa, 5, 6, 20, 21)
    layernorm_regs(k, xb, 7, 8, 22, 23)
    layernorm_finish(k, xa, 5, 6, 9, 20)
    layernorm_finish(k, xb, 7, 8, 10, 22)
    for i in range(16):
        k("buffer_store_short_d16_hi v%d, v3, s[28:31], 0 offen offset:%d" % (Z[i], i * 128))
        k("buffer_store_short_d16_hi v%d, v3, s[28:31], 0 offen offset:%d" % (Z[i] + 1, 2048 + i * 128))
    k("fc_end:")
    k("s_endpgm")
    k.L[cpos:cpos] = ["    " + l for l in cg.const_init()]
    return k, 4 * REG_PITCH

if __name__ == "__main__":
    ka, la = kernel_a(); kb, lb = kernel_b(); kc, lc = kernel_c()
    make_file([(ka, 256, 256, la), (kb, 513, 256, lb), (kc, 256, 256, lc)], "fft.s")
```

```python
from fftgen import *
from kfft import WS_H, WS_LN2, WS_ACT, WS_TAB

M_ = 2048

def gemm_kernel(name, K, N, BN, NB, mode, dbg=0, NWM=4, NWN=2):
    k = Kern(name)
    BM = 128; BK = 64
    NW = NWM * NWN
    NS = K // BK
    NI = BM // 16 // NWM; NJ = BN // 16 // NWN
    WCH = BN // 8
    XB = BM * 128
    nXd = 16 // NW
    nWblk = BK * WCH // 64
    nWd = (nWblk + NW - 1) // NW
    WB = nWd * NW * 1024
    STG = XB + WB
    pitchW = BN * 2
    v = 8
    acc = [[v + 4 * (i * NJ + j) for j in range(NJ)] for i in range(NI)]; v += 4 * NI * NJ
    WF = [[v + 4 * (s * NJ + j) for j in range(NJ)] for s in range(2)]; v += 8 * NJ
    XF = [[v + 4 * (s * NI + i) for i in range(NI)] for s in range(2)]; v += 8 * NI
    v = max(v, WF[0][0] + 4 * NJ + 16)
    vX = [[v + 2 * b + s for s in range(2)] for b in range(NB)]; v += 2 * NB
    vW = [[v + NJ * b + j for j in range(NJ)] for b in range(NB)]; v += NJ * NB
    vDX = [v + u for u in range(nXd)]; v += nXd
    vDW = [v + u for u in range(nWd)]; v += nWd
    vDum = v; vE = v + 1; v += 2
    if mode == 1:
        k("s_load_dwordx4 s[4:7], s[0:1], 32")
    else:
        k("s_load_dwordx4 s[4:7], s[0:1], 48")
    k("""
    s_load_dwordx2 s[16:17], s[0:1], 72
    s_cmp_ge_u32 s2, %d
    s_cbranch_scc1 %s_end
    s_waitcnt lgkmcnt(0)
    """ % (16 * (N // BN), name))
    srd(k, 8, 4, K * N * 2)
    srd(k, 12, 16, M_ * K * 2, WS_LN2 if mode == 1 else WS_ACT)
    if mode == 1:
        srd(k, 20, 6, N * 2)
        srd(k, 24, 16, M_ * N * 2, WS_ACT)
        srd(k, 52, 16, 131072, WS_TAB)
    else:
        srd(k, 20, 16, M_ * N * 2, WS_H)
        srd(k, 24, 6, M_ * N * 2)
    if mode == 1:
        k("""
        s_and_b32 s28, s2, 7
        s_lshr_b32 s29, s2, 3
        s_and_b32 s30, s28, 1
        s_lshl_b32 s30, s30, 3
        s_and_b32 s31, s29, 7
        s_add_u32 s30, s30, s31
        s_lshr_b32 s31, s28, 1
        s_lshl_b32 s31, s31, 2
        s_lshr_b32 s32, s29, 3
        s_add_u32 s31, s31, s32
        """)
    else:
        k("""
        s_and_b32 s28, s2, 7
        s_lshr_b32 s29, s2, 3
        s_and_b32 s30, s28, 3
        s_lshl_b32 s30, s30, 2
        s_and_b32 s31, s29, 3
        s_add_u32 s30, s30, s31
        s_lshr_b32 s31, s28, 2
        s_lshl_b32 s31, s31, %d
        s_lshr_b32 s32, s29, 2
        s_add_u32 s31, s31, s32
        """ % (3 if BN == 64 else 2))
    k("s_lshl_b32 s33, s30, 7")
    k("s_mul_i32 s34, s31, %d" % BN)
    k("""
    v_and_b32 v1, 63, v0
    v_lshrrev_b32 v2, 6, v0
    v_and_b32 v3, 15, v1
    v_lshrrev_b32 v4, 4, v1
    v_readfirstlane_b32 s35, v2
    """)
    k("""
    v_lshrrev_b32 v5, 3, v1
    v_and_b32 v6, 7, v1
    v_xor_b32 v6, v6, v5
    v_lshl_add_u32 v5, v2, %d, v5
    v_add_u32 v5, s33, v5
    s_mov_b32 s36, %d
    v_mul_lo_u32 v5, v5, s36
    v_lshl_add_u32 v5, v6, 4, v5
    """ % ({1: 3, 2: 4, 4: 5}[nXd], K * 2))
    for u in range(nXd):
        k("v_add_u32 v%d, %d, v5" % (vDX[u], u * 8 * K * 2 - u * 1024 + 4096))
    magic = (65536 + WCH - 1) // WCH
    for L in range(nWd * NW * 64): assert (L * magic) >> 16 == L // WCH
    k("s_lshl_b32 s37, s34, 1")
    k("s_mov_b32 s38, %d" % (N * 2))
    for u in range(nWd):
        k("v_mul_u32_u24 v5, %d, v2" % (nWd * 64))
        k("v_add_u32 v5, v5, v1")
        k("v_add_u32 v5, %d, v5" % (u * 64))
        k("v_mul_u32_u24 v6, %d, v5" % magic)
        k("v_lshrrev_b32 v6, 16, v6")
        k("v_mul_u32_u24 v7, %d, v6" % WCH)
        k("v_sub_u32 v%d, v5, v7" % vE)
        k("v_bfe_u32 v7, v6, 3, 1")
        if BN == 224:
            k("v_lshlrev_b32 v7, 1, v7")
        elif BN == 64:
            k("v_lshlrev_b32 v7, 2, v7")
            k("v_and_b32 v%d, 2, v6" % vDum)
            k("v_or_b32 v7, v7, v%d" % vDum)
        else:
            k("v_lshlrev_b32 v7, 3, v7")
            k("v_and_b32 v%d, 3, v6" % vDum)
            k("v_lshl_add_u32 v7, v%d, 1, v7" % vDum)
        k("v_xor_b32 v%d, v%d, v7" % (vE, vE))
        k("v_mul_lo_u32 v6, v6, s38")
        k("v_lshl_add_u32 v6, v%d, 4, v6" % vE)
        k("v_add_u32 v6, s37, v6")
        k("v_add_u32 v6, %d, v6" % (4096 - (u % 4) * 1024))
        if nWd * NW > nWblk:
            k("v_cmp_le_u32 vcc, %d, v5" % (nWblk * 64))
            k("v_mov_b32 v7, 0x7fffffff")
            k("v_cndmask_b32 v6, v6, v7, vcc")
        k("v_mov_b32 v%d, v6" % vDW[u])
    k("s_sub_u32 s8, s8, 4096")
    k("s_subb_u32 s9, s9, 0")
    k("s_add_u32 s10, s10, 4096")
    k("s_sub_u32 s12, s12, 4096")
    k("s_subb_u32 s13, s13, 0")
    k("s_add_u32 s14, s14, 4096")
    k("v_and_b32 v5, %d, v2" % (NWM - 1))
    k("v_mul_u32_u24 v5, %d, v5" % (NI * 16))
    k("v_add_u32 v5, v5, v3")
    k("v_lshlrev_b32 v5, 7, v5")
    k("v_and_b32 v6, 7, v1")
    for s in range(2):
        k("v_or_b32 v7, %d, v4" % (4 * s))
        k("v_xor_b32 v7, v7, v6")
        k("v_lshl_add_u32 v7, v7, 4, v5")
        for b in range(NB):
            k("v_add_u32 v%d, %d, v7" % (vX[b][s], b * STG))
    k("v_lshrrev_b32 v5, 2, v3")
    k("v_lshl_add_u32 v6, v4, 3, v5")
    k("v_mul_u32_u24 v6, %d, v6" % pitchW)
    k("v_and_b32 v7, 3, v1")
    k("v_lshl_add_u32 v6, v7, 3, v6")
    k("v_and_b32 v7, 1, v4")
    if BN == 224:
        k("v_lshlrev_b32 v7, 1, v7")
    elif BN == 64:
        k("v_lshlrev_b32 v7, 2, v7")
        k("v_and_b32 v5, 2, v5")
        k("v_or_b32 v7, v7, v5")
    else:
        k("v_lshlrev_b32 v7, 3, v7")
        k("v_lshl_add_u32 v7, v5, 1, v7")
    k("v_lshrrev_b32 v5, %d, v2" % {1: 0, 2: 1, 4: 2}[NWM])
    k("v_mul_u32_u24 v5, %d, v5" % (NJ * 2))
    for j in range(NJ):
        k("v_add_u32 v%d, %d, v5" % (vE, 2 * j))
        k("v_xor_b32 v%d, v%d, v7" % (vE, vE))
        k("v_lshl_add_u32 v%d, v%d, 4, v6" % (vE, vE))
        for b in range(NB):
            k("v_add_u32 v%d, %d, v%d" % (vW[b][j], b * STG + XB, vE))
    k("s_mul_i32 s40, s35, %d" % (nXd * 1024))
    k("s_mul_i32 s41, s35, %d" % (nWd * 1024))
    k("s_add_u32 s41, s41, %d" % XB)
    k("s_lshl_b32 s56, s35, 10")
    k("s_mov_b32 s57, 0")
    vm = []
    def vwait(tag, extra=""):
        idx = max(i for i, t in enumerate(vm) if t == tag)
        n = len(vm) - 1 - idx
        assert n <= 63
        k("s_waitcnt vmcnt(%d)%s" % (n, extra))
    def dma(st):
        b = st % NB
        if dbg & 2 and st >= NB:
            vm.append(st); k("buffer_load_dword v%d, v%d, s[12:15], 0 offen" % (vDum, vDX[0])); return
        k("s_add_u32 m0, s40, %d" % (b * STG))
        k("s_lshl_b32 s42, s57, 7")
        k("s_mul_i32 s43, s57, %d" % (BK * N * 2))
        for u in range(nXd):
            k("buffer_load_dwordx4 v%d, s[12:15], s42 offen offset:%d lds" % (vDX[u], u * 1024)); vm.append(st)
        k("s_add_u32 s57, s57, 1")
        k("s_cmp_eq_u32 s57, %d" % NS)
        k("s_cselect_b32 s57, 0, s57")
        for u in range(nWd):
            if u % 4 == 0: k("s_add_u32 m0, s41, %d" % (b * STG + u * 1024))
            k("buffer_load_dwordx4 v%d, s[8:11], s43 offen offset:%d lds" % (vDW[u], (u % 4) * 1024)); vm.append(st)
    def reads(st, ks):
        b = st % NB
        for i in range(NI):
            k("ds_read_b128 v[%d:%d], v%d offset:%d" % (XF[ks][i], XF[ks][i] + 3, vX[b][ks], i * 2048))
        for j in range(NJ):
            for half in range(2):
                k("ds_read_b64_tr_b16 v[%d:%d], v%d offset:%d" % (WF[ks][j] + 2 * half, WF[ks][j] + 2 * half + 1, vW[b][j],
                                                                   (ks * 32 + half * 4) * pitchW))
    def mfmas(ks, first):
        if dbg & 4 and not first: return
        for j in range(NJ):
            for i in range(NI):
                a = acc[i][j]
                c = "0" if first else "v[%d:%d]" % (a, a + 3)
                k("v_mfma_f32_16x16x32_bf16 v[%d:%d], v[%d:%d], v[%d:%d], %s" % (a, a + 3, WF[ks][j], WF[ks][j] + 3,
                                                                                 XF[ks][i], XF[ks][i] + 3, c))
    def tabload(b):
        lo = b * STG; hi = min((b + 1) * STG, 131072)
        n = (hi - lo) // 1024
        assert n % NW == 0
        for u in range(n // NW):
            k("s_add_u32 m0, s56, %d" % (lo + u * NW * 1024))
            k("s_mov_b32 s42, m0")
            k("buffer_load_dwordx4 v%d, s[52:55], s42 offen lds" % vDum); vm.append("tab")
    def capture(fn, *a):
        save = k.L; k.L = []
        fn(*a)
        out = k.L; k.L = save
        return out
    def groups(lines):
        gs = []; cur = []
        for l in lines:
            cur.append(l)
            op = l.split()[0]
            if op.startswith("buffer_") or op.startswith("ds_") or op.startswith("v_"):
                gs.append(cur); cur = []
        if cur: gs.append(cur)
        return gs
    def interleave(mf, others):
        gs = groups(others)
        m = len(gs); gi = 0
        for idx, l in enumerate(mf):
            k.L.append(l)
            for _ in range(2):
                if gi < m:
                    k.L.extend(gs[gi]); gi += 1
        while gi < m:
            k.L.extend(gs[gi]); gi += 1
    for st in range(min(NB, NS)): dma(st)
    vwait(0)
    k("s_barrier")
    reads(0, 0)
    for st in range(NS):
        k("s_waitcnt lgkmcnt(0)")
        interleave(capture(mfmas, 0, st == 0), capture(reads, st, 1))
        if st + 1 < NS:
            vwait(st + 1, " lgkmcnt(0)")
            k("s_barrier")
            oth = capture(reads, st + 1, 0)
            if st + NB < NS:
                oth += capture(dma, st + NB)
            elif mode == 1:
                if st + NB == NS: k("v_lshlrev_b32 v%d, 4, v1" % vDum)
                oth += capture(tabload, st % NB)
            interleave(capture(mfmas, 1, False), oth)
        else:
            k("s_waitcnt lgkmcnt(0)")
            mfmas(1, False)
    if mode == 1:
        k("s_barrier")
        tabload((NS - 1) % NB)
    k("v_and_b32 v5, %d, v2" % (NWM - 1))
    k("v_mul_u32_u24 v5, %d, v5" % (NI * 16))
    k("v_add_u32 v5, v5, v3")
    k("v_add_u32 v5, s33, v5")
    k("s_mov_b32 s36, %d" % (N * 2))
    k("v_mul_lo_u32 v5, v5, s36")
    k("v_lshrrev_b32 v6, %d, v2" % {1: 0, 2: 1, 4: 2}[NWM])
    k("v_mul_u32_u24 v6, %d, v6" % (NJ * 16))
    k("v_lshl_add_u32 v6, v4, 2, v6")
    k("v_add_u32 v6, s34, v6")
    k("v_lshlrev_b32 v6, 1, v6")
    k("v_add_u32 v5, v5, v6")
    e = WF[0][0]
    if mode == 1:
        B = [e + 4 * j for j in range(NJ)]; e += 4 * NJ
        for j in range(NJ):
            k("buffer_load_dwordx2 v[%d:%d], v6, s[20:23], 0 offen offset:%d" % (B[j], B[j] + 1, j * 32))
        k("s_waitcnt vmcnt(0)")
        k("s_barrier")
        for j in range(NJ):
            k("v_and_b32 v%d, 0xffff0000, v%d" % (B[j] + 3, B[j] + 1))
            k("v_lshlrev_b32 v%d, 16, v%d" % (B[j] + 2, B[j] + 1))
            k("v_and_b32 v%d, 0xffff0000, v%d" % (B[j] + 1, B[j]))
            k("v_lshlrev_b32 v%d, 16, v%d" % (B[j], B[j]))
        T = e; e += 4
        pend = []
        for i in range(NI):
            for j in range(NJ):
                a0 = acc[i][j]
                for p in range(2):
                    a, b = a0 + 2 * p, a0 + 2 * p + 1
                    t = T + p
                    k("v_cvt_pk_bf16_f32 v%d, v%d, v%d" % (t, a, b))
                    k("v_lshlrev_b32 v%d, 16, v%d" % (a, t))
                    k("v_and_b32 v%d, 0xffff0000, v%d" % (b, t))
                    k("v_pk_add_f32 v[%d:%d], v[%d:%d], v[%d:%d]" % (a, b, a, b, B[j] + 2 * p, B[j] + 2 * p + 1))
                    k("v_cvt_pk_bf16_f32 v%d, v%d, v%d" % (t, a, b))
                    k("v_lshlrev_b32 v%d, 1, v%d" % (a, t))
                    k("v_and_b32 v%d, 0x1fffe, v%d" % (a, a))
                    k("v_lshrrev_b32 v%d, 15, v%d" % (b, t))
                    k("v_and_b32 v%d, 0x1fffe, v%d" % (b, b))
                for p in range(2):
                    a, b = a0 + 2 * p, a0 + 2 * p + 1
                    k("ds_read_u16 v%d, v%d" % (a, a))
                    k("ds_read_u16_d16_hi v%d, v%d" % (b, b))
                pend.append((i, j))
                if len(pend) == 3 or (i == NI - 1 and j == NJ - 1):
                    k("s_waitcnt lgkmcnt(0)")
                    for (ii, jj) in pend:
                        aa = acc[ii][jj]
                        k("v_or_b32 v%d, v%d, v%d" % (aa, aa, aa + 1))
                        k("v_or_b32 v%d, v%d, v%d" % (aa + 1, aa + 2, aa + 3))
                        k("s_mov_b32 s43, %d" % (ii * 16 * N * 2))
                        k("buffer_store_dwordx2 v[%d:%d], v5, s[24:27], s43 offen offset:%d" % (aa, aa + 1, jj * 32))
                    pend = []
    else:
        H = [[e + 2 * (i * NJ + j) for j in range(NJ)] for i in range(NI)]; e += 2 * NI * NJ
        for i in range(NI):
            k("s_mov_b32 s43, %d" % (i * 16 * N * 2))
            for j in range(NJ):
                k("buffer_load_dwordx2 v[%d:%d], v5, s[20:23], s43 offen offset:%d" % (H[i][j], H[i][j] + 1, j * 32))
        k("s_waitcnt vmcnt(0)")
        T = e; e += 4
        for i in range(NI):
            for j in range(NJ):
                a0 = acc[i][j]; h = H[i][j]
                for p in range(2):
                    a, b = a0 + 2 * p, a0 + 2 * p + 1
                    k("v_cvt_pk_bf16_f32 v%d, v%d, v%d" % (T, a, b))
                    k("v_lshlrev_b32 v%d, 16, v%d" % (a, T))
                    k("v_and_b32 v%d, 0xffff0000, v%d" % (b, T))
                    k("v_lshlrev_b32 v%d, 16, v%d" % (T + 1, h + p))
                    k("v_and_b32 v%d, 0xffff0000, v%d" % (T + 2, h + p))
                    k("v_add_f32 v%d, v%d, v%d" % (a, a, T + 1))
                    k("v_add_f32 v%d, v%d, v%d" % (b, b, T + 2))
                    k("v_cvt_pk_bf16_f32 v%d, v%d, v%d" % (a0 + p, a, b))
                k("s_mov_b32 s43, %d" % (i * 16 * N * 2))
                k("buffer_store_dwordx2 v[%d:%d], v5, s[24:27], s43 offen offset:%d" % (a0, a0 + 1, j * 32))
    k("%s_end:" % name)
    k("s_endpgm")
    return k, NB * STG, NW * 64

if __name__ == "__main__":
    import kfft, sys
    outf = sys.argv[1] if len(sys.argv) > 1 else "full.s"
    dbg = int(sys.argv[2]) if len(sys.argv) > 2 else 0
    ka, la = kfft.kernel_a(); kb, lb = kfft.kernel_b(); kc, lc = kfft.kernel_c()
    g1, l1, t1 = gemm_kernel("gemm1_kernel", 1024, 3584, 224, 3, 1, dbg)
    g2, l2, t2 = gemm_kernel("gemm2_kernel", 3584, 1024, 64, 6, 2, dbg, 2, 2)
    make_file([(ka, 512, 256, la), (kb, 513, 256, lb), (kc, 256, 256, lc), (g1, 256, t1, l1), (g2, 256, t2, l2)], outf)
```

```python
from fftgen import *
from kfft import WS_H, WS_LN2, WS_ACT, WS_TAB

M_ = 2048

def gemm_kernel(name, K, N, BN, NB, mode, dbg=0, NWM=4, NWN=2):
    k = Kern(name)
    BM = 128; BK = 64
    NW = NWM * NWN
    NS = K // BK
    NI = BM // 16 // NWM; NJ = BN // 16 // NWN
    WCH = BN // 8
    XB = BM * 128
    nXd = 16 // NW
    nWblk = BK * WCH // 64
    nWd = (nWblk + NW - 1) // NW
    WB = nWd * NW * 1024
    STG = XB + WB
    pitchW = BN * 2
    v = 8
    acc = [[v + 4 * (i * NJ + j) for j in range(NJ)] for i in range(NI)]; v += 4 * NI * NJ
    WF = [[v + 4 * (s * NJ + j) for j in range(NJ)] for s in range(2)]; v += 8 * NJ
    XF = [[v + 4 * (s * NI + i) for i in range(NI)] for s in range(2)]; v += 8 * NI
    v = max(v, WF[0][0] + 4 * NJ + 16)
    vX = [[v + 2 * b + s for s in range(2)] for b in range(NB)]; v += 2 * NB
    vW = [[v + NJ * b + j for j in range(NJ)] for b in range(NB)]; v += NJ * NB
    vDX = [v + u for u in range(nXd)]; v += nXd
    vDW = [v + u for u in range(nWd)]; v += nWd
    vDum = v; vE = v + 1; v += 2
    if mode == 1:
        k("s_load_dwordx4 s[4:7], s[0:1], 32")
    else:
        k("s_load_dwordx4 s[4:7], s[0:1], 48")
    k("""
    s_load_dwordx2 s[16:17], s[0:1], 72
    s_cmp_ge_u32 s2, %d
    s_cbranch_scc1 %s_end
    s_waitcnt lgkmcnt(0)
    """ % (16 * (N // BN), name))
    srd(k, 8, 4, K * N * 2)
    srd(k, 12, 16, M_ * K * 2, WS_LN2 if mode == 1 else WS_ACT)
    if mode == 1:
        srd(k, 20, 6, N * 2)
        srd(k, 24, 16, M_ * N * 2, WS_ACT)
        srd(k, 52, 16, 131072, WS_TAB)
    else:
        srd(k, 20, 16, M_ * N * 2, WS_H)
        srd(k, 24, 6, M_ * N * 2)
    if mode == 1:
        k("""
        s_and_b32 s28, s2, 7
        s_lshr_b32 s29, s2, 3
        s_and_b32 s30, s28, 1
        s_lshl_b32 s30, s30, 3
        s_and_b32 s31, s29, 7
        s_add_u32 s30, s30, s31
        s_lshr_b32 s31, s28, 1
        s_lshl_b32 s31, s31, 2
        s_lshr_b32 s32, s29, 3
        s_add_u32 s31, s31, s32
        """)
    else:
        k("""
        s_and_b32 s28, s2, 7
        s_lshr_b32 s29, s2, 3
        s_and_b32 s30, s28, 3
        s_lshl_b32 s30, s30, 2
        s_and_b32 s31, s29, 3
        s_add_u32 s30, s30, s31
        s_lshr_b32 s31, s28, 2
        s_lshl_b32 s31, s31, %d
        s_lshr_b32 s32, s29, 2
        s_add_u32 s31, s31, s32
        """ % (3 if BN == 64 else 2))
    k("s_lshl_b32 s33, s30, 7")
    k("s_mul_i32 s34, s31, %d" % BN)
    k("""
    v_and_b32 v1, 63, v0
    v_lshrrev_b32 v2, 6, v0
    v_and_b32 v3, 15, v1
    v_lshrrev_b32 v4, 4, v1
    v_readfirstlane_b32 s35, v2
    """)
    k("""
    v_lshrrev_b32 v5, 3, v1
    v_and_b32 v6, 7, v1
    v_xor_b32 v6, v6, v5
    v_lshl_add_u32 v5, v2, %d, v5
    v_add_u32 v5, s33, v5
    s_mov_b32 s36, %d
    v_mul_lo_u32 v5, v5, s36
    v_lshl_add_u32 v5, v6, 4, v5
    """ % ({1: 3, 2: 4, 4: 5}[nXd], K * 2))
    for u in range(nXd):
        k("v_add_u32 v%d, %d, v5" % (vDX[u], u * 8 * K * 2 - u * 1024 + 4096))
    magic = (65536 + WCH - 1) // WCH
    for L in range(nWd * NW * 64): assert (L * magic) >> 16 == L // WCH
    k("s_lshl_b32 s37, s34, 1")
    k("s_mov_b32 s38, %d" % (N * 2))
    for u in range(nWd):
        k("v_mul_u32_u24 v5, %d, v2" % (nWd * 64))
        k("v_add_u32 v5, v5, v1")
        k("v_add_u32 v5, %d, v5" % (u * 64))
        k("v_mul_u32_u24 v6, %d, v5" % magic)
        k("v_lshrrev_b32 v6, 16, v6")
        k("v_mul_u32_u24 v7, %d, v6" % WCH)
        k("v_sub_u32 v%d, v5, v7" % vE)
        k("v_bfe_u32 v7, v6, 3, 1")
        if BN == 224:
            k("v_lshlrev_b32 v7, 1, v7")
        elif BN == 64:
            k("v_lshlrev_b32 v7, 2, v7")
            k("v_and_b32 v%d, 2, v6" % vDum)
            k("v_or_b32 v7, v7, v%d" % vDum)
        else:
            k("v_lshlrev_b32 v7, 3, v7")
            k("v_and_b32 v%d, 3, v6" % vDum)
            k("v_lshl_add_u32 v7, v%d, 1, v7" % vDum)
        k("v_xor_b32 v%d, v%d, v7" % (vE, vE))
        k("v_mul_lo_u32 v6, v6, s38")
        k("v_lshl_add_u32 v6, v%d, 4, v6" % vE)
        k("v_add_u32 v6, s37, v6")
        k("v_add_u32 v6, %d, v6" % (4096 - (u % 4) * 1024))
        if nWd * NW > nWblk:
            k("v_cmp_le_u32 vcc, %d, v5" % (nWblk * 64))
            k("v_mov_b32 v7, 0x7fffffff")
            k("v_cndmask_b32 v6, v6, v7, vcc")
        k("v_mov_b32 v%d, v6" % vDW[u])
    k("s_sub_u32 s8, s8, 4096")
    k("s_subb_u32 s9, s9, 0")
    k("s_add_u32 s10, s10, 4096")
    k("s_sub_u32 s12, s12, 4096")
    k("s_subb_u32 s13, s13, 0")
    k("s_add_u32 s14, s14, 4096")
    k("v_and_b32 v5, %d, v2" % (NWM - 1))
    k("v_mul_u32_u24 v5, %d, v5" % (NI * 16))
    k("v_add_u32 v5, v5, v3")
    k("v_lshlrev_b32 v5, 7, v5")
    k("v_and_b32 v6, 7, v1")
    for s in range(2):
        k("v_or_b32 v7, %d, v4" % (4 * s))
        k("v_xor_b32 v7, v7, v6")
        k("v_lshl_add_u32 v7, v7, 4, v5")
        for b in range(NB):
            k("v_add_u32 v%d, %d, v7" % (vX[b][s], b * STG))
    k("v_lshrrev_b32 v5, 2, v3")
    k("v_lshl_add_u32 v6, v4, 3, v5")
    k("v_mul_u32_u24 v6, %d, v6" % pitchW)
    k("v_and_b32 v7, 3, v1")
    k("v_lshl_add_u32 v6, v7, 3, v6")
    k("v_and_b32 v7, 1, v4")
    if BN == 224:
        k("v_lshlrev_b32 v7, 1, v7")
    elif BN == 64:
        k("v_lshlrev_b32 v7, 2, v7")
        k("v_and_b32 v5, 2, v5")
        k("v_or_b32 v7, v7, v5")
    else:
        k("v_lshlrev_b32 v7, 3, v7")
        k("v_lshl_add_u32 v7, v5, 1, v7")
    k("v_lshrrev_b32 v5, %d, v2" % {1: 0, 2: 1, 4: 2}[NWM])
    k("v_mul_u32_u24 v5, %d, v5" % (NJ * 2))
    for j in range(NJ):
        k("v_add_u32 v%d, %d, v5" % (vE, 2 * j))
        k("v_xor_b32 v%d, v%d, v7" % (vE, vE))
        k("v_lshl_add_u32 v%d, v%d, 4, v6" % (vE, vE))
        for b in range(NB):
            k("v_add_u32 v%d, %d, v%d" % (vW[b][j], b * STG + XB, vE))
    k("s_mul_i32 s40, s35, %d" % (nXd * 1024))
    k("s_mul_i32 s41, s35, %d" % (nWd * 1024))
    k("s_add_u32 s41, s41, %d" % XB)
    k("s_lshl_b32 s56, s35, 10")
    k("s_mov_b32 s57, 0")
    vm = []
    def vwait(tag, extra=""):
        idx = max(i for i, t in enumerate(vm) if t == tag)
        n = len(vm) - 1 - idx
        assert n <= 63
        k("s_waitcnt vmcnt(%d)%s" % (n, extra))
    def dma(st):
        b = st % NB
        if dbg & 2 and st >= NB:
            vm.append(st); k("buffer_load_dword v%d, v%d, s[12:15], 0 offen" % (vDum, vDX[0])); return
        k("s_add_u32 m0, s40, %d" % (b * STG))
        k("s_lshl_b32 s42, s57, 7")
        k("s_mul_i32 s43, s57, %d" % (BK * N * 2))
        for u in range(nXd):
            k("buffer_load_dwordx4 v%d, s[12:15], s42 offen offset:%d lds" % (vDX[u], u * 1024)); vm.append(st)
        k("s_add_u32 s57, s57, 1")
        k("s_cmp_eq_u32 s57, %d" % NS)
        k("s_cselect_b32 s57, 0, s57")
        for u in range(nWd):
            if u % 4 == 0: k("s_add_u32 m0, s41, %d" % (b * STG + u * 1024))
            k("buffer_load_dwordx4 v%d, s[8:11], s43 offen offset:%d lds" % (vDW[u], (u % 4) * 1024)); vm.append(st)
    def reads(st, ks):
        b = st % NB
        for i in range(NI):
            k("ds_read_b128 v[%d:%d], v%d offset:%d" % (XF[ks][i], XF[ks][i] + 3, vX[b][ks], i * 2048))
        for j in range(NJ):
            for half in range(2):
                k("ds_read_b64_tr_b16 v[%d:%d], v%d offset:%d" % (WF[ks][j] + 2 * half, WF[ks][j] + 2 * half + 1, vW[b][j],
                                                                   (ks * 32 + half * 4) * pitchW))
    def mfmas(ks, first):
        if dbg & 4 and not first: return
        for j in range(NJ):
            for i in range(NI):
                a = acc[i][j]
                c = "0" if first else "v[%d:%d]" % (a, a + 3)
                k("v_mfma_f32_16x16x32_bf16 v[%d:%d], v[%d:%d], v[%d:%d], %s" % (a, a + 3, WF[ks][j], WF[ks][j] + 3,
                                                                                 XF[ks][i], XF[ks][i] + 3, c))
    def tabload(b):
        lo = b * STG; hi = min((b + 1) * STG, 131072)
        n = (hi - lo) // 1024
        assert n % NW == 0
        for u in range(n // NW):
            k("s_add_u32 m0, s56, %d" % (lo + u * NW * 1024))
            k("s_mov_b32 s42, m0")
            k("buffer_load_dwordx4 v%d, s[52:55], s42 offen lds" % vDum); vm.append("tab")
    def capture(fn, *a):
        save = k.L; k.L = []
        fn(*a)
        out = k.L; k.L = save
        return out
    def groups(lines):
        gs = []; cur = []
        for l in lines:
            cur.append(l)
            op = l.split()[0]
            if op.startswith("buffer_") or op.startswith("ds_") or op.startswith("v_"):
                gs.append(cur); cur = []
        if cur: gs.append(cur)
        return gs
    def interleave(mf, others):
        gs = groups(others)
        m = len(gs); gi = 0
        for idx, l in enumerate(mf):
            k.L.append(l)
            for _ in range(2):
                if gi < m:
                    k.L.extend(gs[gi]); gi += 1
        while gi < m:
            k.L.extend(gs[gi]); gi += 1
    for st in range(min(NB, NS)): dma(st)
    vwait(0)
    k("s_barrier")
    reads(0, 0)
    for st in range(NS):
        k("s_waitcnt lgkmcnt(0)")
        interleave(capture(mfmas, 0, st == 0), capture(reads, st, 1))
        if st + 1 < NS:
            vwait(st + 1, " lgkmcnt(0)")
            k("s_barrier")
            oth = capture(reads, st + 1, 0)
            if st + NB < NS:
                oth += capture(dma, st + NB)
            elif mode == 1:
                if st + NB == NS: k("v_lshlrev_b32 v%d, 4, v1" % vDum)
                oth += capture(tabload, st % NB)
            interleave(capture(mfmas, 1, False), oth)
        else:
            k("s_waitcnt lgkmcnt(0)")
            mfmas(1, False)
    if mode == 1:
        k("s_barrier")
        tabload((NS - 1) % NB)
    k("v_and_b32 v5, %d, v2" % (NWM - 1))
    k("v_mul_u32_u24 v5, %d, v5" % (NI * 16))
    k("v_add_u32 v5, v5, v3")
    k("v_add_u32 v5, s33, v5")
    k("s_mov_b32 s36, %d" % (N * 2))
    k("v_mul_lo_u32 v5, v5, s36")
    k("v_lshrrev_b32 v6, %d, v2" % {1: 0, 2: 1, 4: 2}[NWM])
    k("v_mul_u32_u24 v6, %d, v6" % (NJ * 16))
    k("v_lshl_add_u32 v6, v4, 2, v6")
    k("v_add_u32 v6, s34, v6")
    k("v_lshlrev_b32 v6, 1, v6")
    k("v_add_u32 v5, v5, v6")
    e = WF[0][0]
    if mode == 1:
        B = [e + 4 * j for j in range(NJ)]; e += 4 * NJ
        for j in range(NJ):
            k("buffer_load_dwordx2 v[%d:%d], v6, s[20:23], 0 offen offset:%d" % (B[j], B[j] + 1, j * 32))
        k("s_waitcnt vmcnt(0)")
        k("s_barrier")
        for j in range(NJ):
            k("v_and_b32 v%d, 0xffff0000, v%d" % (B[j] + 3, B[j] + 1))
            k("v_lshlrev_b32 v%d, 16, v%d" % (B[j] + 2, B[j] + 1))
            k("v_and_b32 v%d, 0xffff0000, v%d" % (B[j] + 1, B[j]))
            k("v_lshlrev_b32 v%d, 16, v%d" % (B[j], B[j]))
        T = e; e += 4
        pend = []
        for i in range(NI):
            for j in range(NJ):
                a0 = acc[i][j]
                for p in range(2):
                    a, b = a0 + 2 * p, a0 + 2 * p + 1
                    t = T + p
                    k("v_cvt_pk_bf16_f32 v%d, v%d, v%d" % (t, a, b))
                    k("v_lshlrev_b32 v%d, 16, v%d" % (a, t))
                    k("v_and_b32 v%d, 0xffff0000, v%d" % (b, t))
                    k("v_pk_add_f32 v[%d:%d], v[%d:%d], v[%d:%d]" % (a, b, a, b, B[j] + 2 * p, B[j] + 2 * p + 1))
                    k("v_cvt_pk_bf16_f32 v%d, v%d, v%d" % (t, a, b))
                    k("v_lshlrev_b32 v%d, 1, v%d" % (a, t))
                    k("v_and_b32 v%d, 0x1fffe, v%d" % (a, a))
                    k("v_lshrrev_b32 v%d, 15, v%d" % (b, t))
                    k("v_and_b32 v%d, 0x1fffe, v%d" % (b, b))
                for p in range(2):
                    a, b = a0 + 2 * p, a0 + 2 * p + 1
                    k("ds_read_u16 v%d, v%d" % (a, a))
                    k("ds_read_u16_d16_hi v%d, v%d" % (b, b))
                pend.append((i, j))
                if len(pend) == 3 or (i == NI - 1 and j == NJ - 1):
                    k("s_waitcnt lgkmcnt(0)")
                    for (ii, jj) in pend:
                        aa = acc[ii][jj]
                        k("v_or_b32 v%d, v%d, v%d" % (aa, aa, aa + 1))
                        k("v_or_b32 v%d, v%d, v%d" % (aa + 1, aa + 2, aa + 3))
                        k("s_mov_b32 s43, %d" % (ii * 16 * N * 2))
                        k("buffer_store_dwordx2 v[%d:%d], v5, s[24:27], s43 offen offset:%d" % (aa, aa + 1, jj * 32))
                    pend = []
    else:
        H = [[e + 2 * (i * NJ + j) for j in range(NJ)] for i in range(NI)]; e += 2 * NI * NJ
        for i in range(NI):
            k("s_mov_b32 s43, %d" % (i * 16 * N * 2))
            for j in range(NJ):
                k("buffer_load_dwordx2 v[%d:%d], v5, s[20:23], s43 offen offset:%d" % (H[i][j], H[i][j] + 1, j * 32))
        k("s_waitcnt vmcnt(0)")
        T = e; e += 4
        for i in range(NI):
            for j in range(NJ):
                a0 = acc[i][j]; h = H[i][j]
                for p in range(2):
                    a, b = a0 + 2 * p, a0 + 2 * p + 1
                    k("v_cvt_pk_bf16_f32 v%d, v%d, v%d" % (T, a, b))
                    k("v_lshlrev_b32 v%d, 16, v%d" % (a, T))
                    k("v_and_b32 v%d, 0xffff0000, v%d" % (b, T))
                    k("v_lshlrev_b32 v%d, 16, v%d" % (T + 1, h + p))
                    k("v_and_b32 v%d, 0xffff0000, v%d" % (T + 2, h + p))
                    k("v_add_f32 v%d, v%d, v%d" % (a, a, T + 1))
                    k("v_add_f32 v%d, v%d, v%d" % (b, b, T + 2))
                    k("v_cvt_pk_bf16_f32 v%d, v%d, v%d" % (a0 + p, a, b))
                k("s_mov_b32 s43, %d" % (i * 16 * N * 2))
                k("buffer_store_dwordx2 v[%d:%d], v5, s[24:27], s43 offen offset:%d" % (a0, a0 + 1, j * 32))
    k("%s_end:" % name)
    k("s_endpgm")
    return k, NB * STG, NW * 64

if __name__ == "__main__":
    import kfft, sys
    outf = sys.argv[1] if len(sys.argv) > 1 else "full.s"
    dbg = int(sys.argv[2]) if len(sys.argv) > 2 else 0
    ka, la = kfft.kernel_a(); kb, lb = kfft.kernel_b(); kc, lc = kfft.kernel_c()
    g1, l1, t1 = gemm_kernel("gemm1_kernel", 1024, 3584, 224, 3, 1, dbg, 2, 2)
    g2, l2, t2 = gemm_kernel("gemm2_kernel", 3584, 1024, 64, 6, 2, dbg)
    make_file([(ka, 512, 256, la), (kb, 513, 256, lb), (kc, 256, 256, lc), (g1, 256, t1, l1), (g2, 256, t2, l2)], outf)
```
